```python
import torch

def _softmax(x, axis=-1):
    return torch.softmax(x, dim=axis)
def _gelu(x):
    return torch.nn.functional.gelu(x, approximate="tanh")
def _silu(x):
    return torch.nn.functional.silu(x)
def _sigmoid(x):
    return torch.sigmoid(x)
def _layernorm(x, axis=-1, eps=1e-5):
    m = x.mean(dim=axis, keepdim=True)
    v = x.var(dim=axis, keepdim=True, unbiased=False)
    return (x - m) / torch.sqrt(v + eps)
def _scatter_add(tgt, idx, src, axis=0):
    return tgt.clone().index_add_(axis, idx, src)
def _segment_sum(src, seg, n):
    out = torch.zeros((n,) + src.shape[1:], dtype=src.dtype)
    return out.index_add_(0, seg, src)
def _pad(x, pw):
    flat = tuple(v for pair in reversed(pw) for v in pair)
    return torch.nn.functional.pad(x, flat)

kernel_name = 'concat_heads__mha_block_cached__gqa_block_cached__near_ridge'

def setup_inputs():

    _w = (lambda a: (lambda t: t.to(torch.bfloat16) if t.is_floating_point() else t)(torch.as_tensor(a)))
    def _A_setup():
        B, Sq, D = 8, 240, 512
        H, Sk, Dh = 32, 1024, 128
        return {
            "x": _w((lambda *s: torch.randn(*s, dtype=torch.bfloat16) * 0.8)(B, Sq, D)),
            "k_cache": _w((lambda *s: torch.randn(*s, dtype=torch.bfloat16) * 0.8)(B, H, Sk, Dh)),
            "v_cache": _w((lambda *s: torch.randn(*s, dtype=torch.bfloat16) * 0.05)(B, H, Sk, Dh)),
            "wq": _w((lambda *s: torch.randn(*s, dtype=torch.bfloat16) * 0.8)(D, H * Dh) * (D ** -0.5)),
            "wo": _w((lambda *s: torch.randn(*s, dtype=torch.bfloat16) * 0.05)(H * Dh, D) * ((H * Dh) ** -0.5)),
        }
    _A_in = _A_setup()

    def _B_setup():
        B, Sq, D = 8, 240, 512
        Hq, Hkv, Sk, Dh = 32, 32, 1024, 128
        assert Hq % Hkv == 0, (Hq, Hkv)
        return {
            "x": _w((lambda *s: torch.randn(*s, dtype=torch.bfloat16) * 0.8)(B, Sq, D)),
            "k_cache": _w((lambda *s: torch.randn(*s, dtype=torch.bfloat16) * 0.8)(B, Hkv, Sk, Dh)),
            "v_cache": _w((lambda *s: torch.randn(*s, dtype=torch.bfloat16) * 0.05)(B, Hkv, Sk, Dh)),
            "wq": _w((lambda *s: torch.randn(*s, dtype=torch.bfloat16) * 0.8)(D, Hq * Dh) * (D ** -0.5)),
            "wo": _w((lambda *s: torch.randn(*s, dtype=torch.bfloat16) * 0.05)(Hq * Dh, D) * ((Hq * Dh) ** -0.5)),
        }
    _B_in = _B_setup()

    return {
        "A_x": _A_in["x"],
        "A_k_cache": _A_in["k_cache"],
        "A_v_cache": _A_in["v_cache"],
        "A_wq": _A_in["wq"],
        "A_wo": _A_in["wo"],
        "B_x": _B_in["x"],
        "B_k_cache": _B_in["k_cache"],
        "B_v_cache": _B_in["v_cache"],
        "B_wq": _B_in["wq"],
        "B_wo": _B_in["wo"],
    }

def reference(A_x, A_k_cache, A_v_cache, A_wq, A_wo, B_x, B_k_cache, B_v_cache, B_wq, B_wo):
    def _A_ref(x, k_cache, v_cache, wq, wo):
        B, Sq, D = x.shape
        H, Dh = 32, 128
        q = (lambda x, *d: x.permute(*d))((x @ wq).reshape(B, Sq, H, Dh), 0, 2, 1, 3)
        scores = torch.einsum("bhqd,bhkd->bhqk", q, k_cache) * (Dh ** -0.5)
        p = _softmax(scores, axis=-1)
        o = torch.einsum("bhqk,bhkd->bhqd", p, v_cache)
        return (lambda x, *d: x.permute(*d))(o, 0, 2, 1, 3).reshape(B, Sq, H * Dh) @ wo

    def _B_ref(x, k_cache, v_cache, wq, wo):
        B, Sq, D = x.shape
        Hq, Dh = 32, 128
        Hkv = k_cache.shape[1]
        rep = Hq // Hkv
        q = (lambda x, *d: x.permute(*d))((x @ wq).reshape(B, Sq, Hq, Dh), 0, 2, 1, 3)
        k = (lambda x, n, axis: torch.repeat_interleave(x, n, dim=axis))(k_cache, rep, axis=1)
        v = (lambda x, n, axis: torch.repeat_interleave(x, n, dim=axis))(v_cache, rep, axis=1)
        scores = torch.einsum("bhqd,bhkd->bhqk", q, k) * (Dh ** -0.5)
        p = _softmax(scores, axis=-1)
        o = torch.einsum("bhqk,bhkd->bhqd", p, v)
        return (lambda x, *d: x.permute(*d))(o, 0, 2, 1, 3).reshape(B, Sq, Hq * Dh) @ wo

    a = _A_ref(A_x, A_k_cache, A_v_cache, A_wq, A_wo)
    b = _B_ref(B_x, B_k_cache, B_v_cache, B_wq, B_wo)
    return torch.concatenate([a, b], axis=-1)
```

```python
import re

REG_RE = re.compile(r"^(-|\|)?\|?([vas])(?:\[(\d+):(\d+)\]|(\d+))\|?$")
TRANS = ("v_exp_f32", "v_rcp_f32", "v_log_f32", "v_rsq_f32", "v_sqrt_f32")


def regs_of(tok):
    tok = tok.strip()
    if tok.startswith("abs(") and tok.endswith(")"):
        tok = tok[4:-1]
    if tok in ("vcc", "exec", "m0", "scc"):
        return [tok]
    m = REG_RE.match(tok)
    if not m:
        return []
    k = m.group(2)
    if m.group(5) is not None:
        return [k + m.group(5)]
    return [k + str(i) for i in range(int(m.group(3)), int(m.group(4)) + 1)]


class I:
    def __init__(self, text, **kw):
        self.text = text.strip()
        self.kw = kw
        self.parse()

    def parse(self):
        t = self.text.split(";")[0].strip()
        self.reads, self.writes = [], []
        self.kind = "other"
        self.srcc = []
        self.ab = []
        if t.endswith(":") or t.startswith(".") or not t:
            self.kind = "label"
            self.mn = ""
            return
        parts = t.split(None, 1)
        mn = parts[0]
        self.mn = mn
        ops = []
        if len(parts) > 1:
            ops = [o.strip() for o in re.split(r",(?![^\[]*\])", parts[1])]
            last = ops[-1].split()
            mods = last[1:]
            ops[-1] = last[0] if last else ""
        else:
            mods = []
        self.mods = mods
        R = lambda i: regs_of(ops[i]) if i < len(ops) else []
        if mn.startswith("v_mfma"):
            self.kind = "mfma"
            self.writes = R(0)
            self.ab = R(1) + R(2)
            self.srcc = R(3)
            self.reads = self.ab + self.srcc
            self.passes = 4 if "16x16x32" in mn else 8
        elif mn.startswith("v_permlane"):
            self.kind = "valu"
            self.writes = R(0) + R(1)
            self.reads = R(0) + R(1)
        elif mn.startswith("v_cmp"):
            self.kind = "valu"
            self.writes = R(0)
            self.reads = R(1) + R(2)
        elif mn.startswith("v_"):
            self.kind = "valu"
            self.writes = R(0)
            for i in range(1, len(ops)):
                self.reads += R(i)
            if mn.startswith("v_fmac") or mn.startswith("v_dot2c"):
                self.reads += R(0)
            if mn.startswith("v_cndmask") and len(ops) == 3:
                self.reads.append("vcc")
        elif mn.startswith("ds_read"):
            self.kind = "dsr"
            self.writes = R(0)
            self.reads = R(1)
        elif mn.startswith("ds_"):
            self.kind = "dsw"
            for i in range(len(ops)):
                self.reads += R(i)
        elif mn.startswith("buffer_load") or mn.startswith("global_load"):
            if "lds" in mods:
                self.kind = "dma"
                for i in range(len(ops)):
                    self.reads += R(i)
                self.reads.append("m0")
            else:
                self.kind = "vload"
                self.writes = R(0)
                for i in range(1, len(ops)):
                    self.reads += R(i)
        elif mn.startswith("buffer_store") or mn.startswith("global_store") or mn.startswith("buffer_atomic") or mn.startswith("global_atomic"):
            self.kind = "vstore"
            for i in range(len(ops)):
                self.reads += R(i)
            self.data = R(0) if mn.startswith("buffer") else R(1)
        elif mn.startswith("buffer_"):
            self.kind = "vother"
        elif mn == "s_waitcnt" or mn == "WAIT":
            self.kind = "wait"
        elif mn == "s_barrier":
            self.kind = "barrier"
        elif mn == "s_nop":
            self.kind = "nop"
            self.n = int(ops[0], 0) + 1
        elif mn.startswith("s_load") or mn.startswith("s_memtime") or mn.startswith("s_memrealtime"):
            self.kind = "smem"
            self.writes = R(0)
            self.reads = R(1)
        elif mn.startswith("s_cmp") or mn.startswith("s_cbranch") or mn.startswith("s_branch") or mn in ("s_endpgm", "s_setprio", "s_sleep"):
            self.kind = "salu"
            for i in range(len(ops)):
                self.reads += R(i)
            if "vcc" in mn:
                self.reads.append("vcc")
        elif mn.startswith("s_"):
            self.kind = "salu"
            self.writes = R(0)
            for i in range(1, len(ops)):
                self.reads += R(i)
        else:
            raise ValueError("unknown instr: " + self.text)

    def states(self):
        if self.kind == "label":
            return 0
        if self.kind == "nop":
            return self.n
        return 1


def WAIT(lgkm=None, vm=None):
    i = I("WAIT", lgkm=lgkm, vm=vm)
    return i


def mk(x):
    if isinstance(x, I):
        return [x]
    if isinstance(x, (list, tuple)):
        r = []
        for y in x:
            r += mk(y)
        return r
    return [I(l) for l in x.strip("\n").split("\n") if l.strip()]


class Gaps:
    def __init__(self, mfmas):
        self.mf = mk(mfmas)
        n = len(self.mf)
        self.sc = [[] for _ in range(n)]
        self.mem = [[] for _ in range(n)]
        self.va = [[] for _ in range(n)]

    def put(self, g, x):
        for ins in mk(x):
            if ins.kind in ("salu", "wait", "barrier", "nop", "smem", "label"):
                self.sc[g].append(ins)
            elif ins.kind in ("dsr", "dsw", "dma", "vload", "vstore"):
                self.mem[g].append(ins)
            else:
                self.va[g].append(ins)

    def cost(self, g):
        c = 0
        for i in self.mem[g]:
            c += 4 if i.kind == "dsr" else 8
        for i in self.va[g]:
            c += 8 if i.mn in TRANS else 4
        c += 4 * max(0, len(self.sc[g]) - 1)
        c += 4 * max(0, len(self.mem[g]) - 1)
        return max(0, c - 8)

    def emit(self):
        out = []
        for g, m in enumerate(self.mf):
            out.append(m)
            out += self.sc[g] + self.mem[g] + self.va[g]
        return out

    def excess(self):
        return sum(self.cost(g) for g in range(len(self.mf)))


class Prog:
    def __init__(self):
        self.order = []
        self.static = {}
        self.traces = {}

    def define(self, name, instrs):
        instrs = mk(instrs)
        assert name not in self.static, name
        self.static[name] = instrs
        self.order.append(name)
        for i in instrs:
            if i.mn == "WAIT":
                i.res_l = None
                i.res_v = None
        return instrs

    def visit(self, trace, name, instrs=None):
        if instrs is None:
            instrs = self.static[name]
        else:
            instrs = mk(instrs)
            if name not in self.static:
                self.define(name, instrs)
            st = self.static[name]
            assert len(st) == len(instrs), (name, len(st), len(instrs))
            for a, b in zip(st, instrs):
                assert a.text == b.text, (name, a.text, b.text)
        self.traces.setdefault(trace, []).append((name, instrs))

    def flat(self, trace):
        out = []
        for name, ins in self.traces[trace]:
            st = self.static[name]
            for a, b in zip(st, ins):
                out.append((a, b, name))
        return out

    def resolve(self):
        for tn in self.traces:
            fl = self.flat(tn)
            n = len(fl)
            dsq = []
            vmq = []
            for idx, (st, dy, name) in enumerate(fl):
                if dy.kind in ("dsr", "dsw"):
                    dsq.append((idx, set(dy.writes)))
                elif dy.kind in ("dma", "vload", "vstore"):
                    vmq.append((idx, dy.kw.get("tag"), set(dy.writes)))
                elif dy.mn == "WAIT":
                    lg = dy.kw.get("lgkm")
                    if lg == "auto":
                        need = set()
                        j = idx + 1
                        while j < n:
                            d2 = fl[j][1]
                            if (d2.mn == "WAIT" and d2.kw.get("lgkm") is not None) or (d2.mn == "s_waitcnt" and "lgkmcnt" in d2.text):
                                break
                            need |= set(d2.reads) | (set(d2.writes) if d2.kind != "dsr" else set())
                            j += 1
                        N = 15
                        for k in range(len(dsq) - 1, max(-1, len(dsq) - 17), -1):
                            if dsq[k][1] & need:
                                N = min(N, len(dsq) - 1 - k)
                                break
                        st.res_l = N if st.res_l is None else min(st.res_l, N)
                    elif lg is not None:
                        st.res_l = lg
                    vm = dy.kw.get("vm")
                    if isinstance(vm, (list, tuple, set)):
                        N = 63
                        tags = set(vm)
                        for k in range(len(vmq) - 1, -1, -1):
                            if vmq[k][1] in tags:
                                N = min(N, len(vmq) - 1 - k)
                                break
                        st.res_v = N if st.res_v is None else min(st.res_v, N)
                    elif vm == "auto":
                        need = set()
                        j = idx + 1
                        while j < n:
                            d2 = fl[j][1]
                            if (d2.mn == "WAIT" and d2.kw.get("vm") is not None) or (d2.mn == "s_waitcnt" and "vmcnt" in d2.text):
                                break
                            need |= set(d2.reads) | (set(d2.writes) if d2.kind != "vload" else set())
                            j += 1
                        N = 63
                        for k in range(len(vmq) - 1, max(-1, len(vmq) - 65), -1):
                            if vmq[k][2] & need:
                                N = min(N, len(vmq) - 1 - k)
                                break
                        st.res_v = N if st.res_v is None else min(st.res_v, N)
                    elif vm is not None:
                        st.res_v = vm

    def wait_text(self, st):
        w = []
        if st.res_v is not None:
            w.append(f"vmcnt({st.res_v})")
        if st.res_l is not None:
            w.append(f"lgkmcnt({st.res_l})")
        assert w, "unresolved WAIT (segment never visited?)"
        return "s_waitcnt " + " ".join(w)

    def text(self):
        out = []
        for name in self.order:
            out.append(f"; ---- {name}")
            for i in self.static[name]:
                t = self.wait_text(i) if i.mn == "WAIT" else i.text
                out.append(t if i.kind == "label" else "    " + t)
        return "\n".join(out) + "\n"

    def check(self, verbose=True):
        errs = []
        for tn in self.traces:
            fl = self.flat(tn)
            pos = 0
            lastw = {}
            lastc = {}
            laststore = {}
            dsq = []
            vmq = []
            smem_pending = set()
            region = {}
            reads_out = {}
            for idx, (st, dy, name) in enumerate(fl):
                k = dy.kind
                if k == "label":
                    continue

                def err(msg):
                    errs.append(f"[{tn}/{name}] {msg}: {dy.text}")

                def dist(p):
                    return pos - p - 1 if True else 0
                for r in dy.reads + dy.writes:
                    w = lastw.get(r)
                    if not w:
                        continue
                    wp, wi = w
                    d = pos - wp
                    isread = r in dy.reads
                    if wi.kind == "valu" and k == "mfma" and isread and d < 2:
                        err(f"VALU->MFMA {r} dist {d}")
                    if wi.kind == "mfma":
                        need = 8 if wi.passes == 4 else 12
                        if k == "mfma":
                            if r in dy.ab and d < need:
                                err(f"MFMA D->A/B {r} dist {d}")
                            if r in dy.srcc and dy.srcc != wi.writes and d < need - 2:
                                err(f"MFMA D->C overlap {r} dist {d}")
                            if (r in dy.writes and r not in dy.srcc) and d < need - 2:
                                err(f"MFMA D->D WAW {r} dist {d}")
                        elif k in ("valu", "dsr", "dsw", "dma", "vload", "vstore") and d < need:
                            err(f"MFMA D->{k} {r} dist {d}")
                    if wi.kind == "valu" and wi.mn in TRANS and k == "valu" and isread and dy.mn not in TRANS and d < 1:
                        err(f"trans->VALU {r}")
                    if wi.kind == "valu" and dy.mn.startswith("v_permlane") and d < 2:
                        err(f"VALU->permlane {r} dist {d}")
                    if wi.kind == "valu" and dy.mn.startswith("v_read") and isread and r[0] == "v" and r != "vcc" and d < 1:
                        err(f"VALU->readlane {r}")
                    if wi.kind == "valu" and (r[0] == "s" or r == "vcc") and isread:
                        if k in ("dma", "vload", "vstore") and d < 5:
                            err(f"VALU sgpr->VMEM {r} dist {d}")
                        if k == "valu" and d < 2:
                            err(f"VALU sgpr->VALU {r} dist {d}")
                        if k == "salu" and d < 2:
                            err(f"VALU sgpr->SALU {r} dist {d} (padding policy)")
                    if r == "m0" and wi.kind == "salu" and k == "dma" and d < 1:
                        err("m0->DMA")
                    if "dpp" in dy.mn and isread and d < 2:
                        err("->DPP")
                if k == "valu":
                    for r in dy.writes:
                        c = lastc.get(r)
                        if c and pos - c[0] < (3 if c[1].passes == 4 else 7):
                            err(f"MFMA C read -> VALU write {r}")
                        s = laststore.get(r)
                        if s is not None and pos - s < 2:
                            err(f"store data WAR {r}")
                touched = set(dy.reads) | set(dy.writes)
                for q, nm in ((dsq, "ds"), (vmq, "vm")):
                    for op in q:
                        hit = set(op.writes) & touched
                        if hit and not (k == op.kind and not (set(op.writes) & set(dy.reads))):
                            err(f"use of pending {nm} result {sorted(hit)[:2]} from '{op.text}'")
                if smem_pending & touched and not (smem_pending & touched) <= {"s86", "s87", "s88", "s89"}:
                    err("use of pending smem result")
                if k == "dsr" and "rd" in dy.kw:
                    rg, content = dy.kw["rd"]
                    stt = region.get(rg)
                    if content is not None:
                        if not stt or stt["content"] != content:
                            err(f"LDS read {rg} expects {content}, has {stt and stt['content']}")
                        elif dy.kw.get("private"):
                            if stt["pending"]:
                                err(f"LDS private read {rg} before own DMA landed")
                        elif not stt["visible"]:
                            err(f"LDS read {rg} {content} not visible yet")
                    reads_out.setdefault(rg, []).append({"op": dy, "safe": False})
                if k == "dma" and "wr" in dy.kw:
                    rgs, content = dy.kw["wr"]
                    if not isinstance(rgs, (list, tuple)) or isinstance(rgs[0], str):
                        rgs = [rgs]
                    for i_r, rg in enumerate(rgs):
                        for ro in reads_out.get(rg, []):
                            if not ro["safe"]:
                                err(f"DMA into {rg} while read '{ro['op'].text}' not retired+barriered")
                                break
                        reads_out[rg] = []
                        stt = region.get(rg)
                        if i_r == 0:
                            if not stt or stt["content"] != content:
                                if stt and (stt["pending"] or not stt["visible"]) and not dy.kw.get("samewave"):
                                    err(f"DMA into {rg} while older DMA {stt['content']} may be in flight")
                                stt = region[rg] = {"content": content, "pending": [], "visible": False}
                            stt["pending"].append(dy)
                            stt["visible"] = False
                        else:
                            if stt and (stt["pending"] or not stt["visible"]):
                                err(f"DMA clobbers alias {rg} with DMA in flight")
                            region[rg] = {"content": "clobbered", "pending": [], "visible": True}
                if k == "wait":
                    if dy.mn == "WAIT":
                        lv, vv = st.res_l, st.res_v
                    else:
                        m = re.search(r"lgkmcnt\((\d+)\)", dy.text)
                        lv = int(m.group(1)) if m else None
                        m = re.search(r"vmcnt\((\d+)\)", dy.text)
                        vv = int(m.group(1)) if m else None
                    if lv is not None:
                        if lv == 0:
                            smem_pending = set()
                        dsq = dsq[len(dsq) - lv:] if lv else []
                    if vv is not None:
                        vmq = vmq[len(vmq) - vv:] if vv else []
                        ids = set(id(x) for x in vmq)
                        for stt in region.values():
                            stt["pending"] = [p for p in stt["pending"] if id(p) in ids]
                if k == "barrier":
                    ids = set(id(x) for x in dsq)
                    for rg, lst in reads_out.items():
                        for ro in lst:
                            if id(ro["op"]) not in ids:
                                ro["safe"] = True
                    for stt in region.values():
                        if not stt["pending"]:
                            stt["visible"] = True
                pos += dy.states()
                if k in ("dsr", "dsw"):
                    dsq.append(dy)
                if k in ("dma", "vload", "vstore"):
                    vmq.append(dy)
                if k == "smem":
                    smem_pending |= set(dy.writes)
                if k == "vstore" and len(dy.data) >= 3:
                    for r in dy.data:
                        laststore[r] = pos
                for r in dy.writes:
                    lastw[r] = (pos, dy)
                if k == "mfma":
                    for r in dy.srcc:
                        lastc[r] = (pos, dy)
        if verbose:
            seen = set()
            for e in errs:
                if e not in seen:
                    print("CHECK:", e)
                    seen.add(e)
        return errs
```

```python
NAME = "concat_heads__mha_block_cached__gqa_block_cached__near_ridge"

HDR_COMMENT = """; Kernarg layout for this problem (104 bytes, ptrs only, base s[0:1]):
"""

class Asm:
    def __init__(self):
        self.lines = []
    def __call__(self, s):
        for l in s.strip("\n").split("\n"):
            self.lines.append("    " + l.strip() if not l.strip().endswith(":") else l.strip())
    def label(self, l):
        self.lines.append(l + ":")
    def text(self):
        return "\n".join(self.lines) + "\n"

def kernel_text(label, body):
    return f""".globl {label}
.p2align 8
.type {label},@function
{label}:
{body}"""

def kd(label, vgpr, accum, sgpr=102):
    return f""".p2align 6
.amdhsa_kernel {label}
  .amdhsa_next_free_vgpr {vgpr}
  .amdhsa_next_free_sgpr {sgpr}
  .amdhsa_accum_offset {accum}
  .amdhsa_group_segment_fixed_size 0
  .amdhsa_kernarg_size 104
  .amdhsa_user_sgpr_count 2
  .amdhsa_user_sgpr_kernarg_segment_ptr 1
  .amdhsa_system_sgpr_workgroup_id_x 1
.end_amdhsa_kernel
"""

def whole(launches, kernels):
    s = HDR_COMMENT
    for (label, grid, block, lds) in launches:
        s += f"; @launch kernel={label} grid=({grid},1,1) block=({block},1,1) lds={lds}\n"
    s += '.amdgcn_target "amdgcn-amd-amdhsa--gfx950"\n.text\n'
    for (label, body, vgpr, accum) in kernels:
        s += kernel_text(label, body)
    s += "L_codeend:\n"
    s += '.section .rodata,"a"\n'
    for (label, body, vgpr, accum) in kernels:
        s += kd(label, vgpr, accum)
    return s
```

```python
import struct
from asmlib import *

R = 8
KBASE, VBASE, XBASE = 0, 65536, 131072
SB = [65536, 32768, 98304, 131072]
SB_ALIAS = [[("V", i) for i in range(4)], [("K", i) for i in range(4, 8)], [("V", i) for i in range(4, 8)], []]
FLAG = XBASE
OWS_BRANCH = 120 * 128 * 1024
QSCALE = 1.4426950408889634 / (128 ** 0.5)
LTHRESH = float(2 ** 30)


def f2u(f):
    return struct.unpack("<I", struct.pack("<f", f))[0]


sK, sV, sX, sW, sO = 4, 8, 12, 16, 20
sWAVE, sKOFF, sVOFF, sXOFF, sWOFF = 24, 25, 26, 27, 28
sKVL = 29
sCUR, sN1, sN2, sN3, sDMA, sDELTA = 30, 31, 32, 33, 34, 35
sCNT, sHEAD, sRETRY, sOOFF, sT0, sT1, sT2, sT3 = 36, 37, 38, 39, 40, 41, 42, 43
sBAD = 44
sC = 46
sTH = 48
sTS = 70
srd = lambda b: f"s[{b}:{b+3}]"

AA = lambda u: 8 + u
XA = 16
XV = lambda qt: 17 + qt
WV = lambda i: 21 + i
KV0, KV1, VV0, VV1 = 25, 26, 27, 28
KA = lambda j: 8 + j
VA = lambda t: 12 + t
LV = {0: 20, 2: 22}
OVOFF = 29
S = lambda qt, e: 32 + qt * 8 + e
P = lambda qt: 64 + qt * 4
NM = lambda qt: 80 + qt * 4
LS = {1: 96, 3: 100}
ONES = 104
MG = lambda qt: 108 + qt
TMP = 112
O = lambda qt, t: 128 + (qt * 8 + t) * 4
KF = lambda par, kt, j: par * 32 + (kt * 4 + j) * 4
VF = lambda par, t: 64 + par * 32 + t * 4
Q = lambda hh, qt, j: 128 + hh * 64 + (qt * 4 + j) * 4
AF = lambda T: 128 + T * 4
XF = lambda par, qt: 192 + par * 16 + qt * 4


def ACC(T, qt):
    i = T * 4 + qt
    return ("v", 32 + 4 * i) if i < 56 else ("a", 224 + 4 * (i - 56))


def rr(k, b, n=4):
    return f"{k}[{b}:{b+n-1}]"


MF = "v_mfma_f32_16x16x32_bf16"


def dma_k(tile):
    slot = tile % R
    al = [("SB", 1)] if slot >= 4 else []
    wr = ([("K", slot)] + al, f"K{tile}")
    return [I(f"s_add_u32 m0, s{sKVL}, {KBASE + slot*8192}"),
            I(f"buffer_load_dwordx4 v{KV0}, {srd(sK)}, s{sKOFF} offen nt lds", tag=f"K{tile}", wr=wr),
            I(f"buffer_load_dwordx4 v{KV1}, {srd(sK)}, s{sKOFF} offen offset:1024 nt lds", tag=f"K{tile}", wr=wr),
            I(f"s_add_u32 s{sKOFF}, s{sKOFF}, 8192")]


def dma_v(tile):
    slot = tile % R
    al = [("SB", 2)] if slot >= 4 else [("SB", 0)]
    wr = ([("V", slot)] + al, f"V{tile}")
    return [I(f"s_add_u32 m0, s{sKVL}, {VBASE + slot*8192}"),
            I(f"buffer_load_dwordx4 v{VV0}, {srd(sV)}, s{sVOFF} offen nt lds", tag=f"V{tile}", wr=wr),
            I(f"buffer_load_dwordx4 v{VV1}, {srd(sV)}, s{sVOFF} offen offset:1024 nt lds", tag=f"V{tile}", wr=wr),
            I(f"s_add_u32 s{sVOFF}, s{sVOFF}, 8192")]


def rd_k(tile, kt, j):
    slot = tile % R
    return I(f"ds_read_b128 {rr('a', KF(tile & 1, kt, j))}, v{KA(j)} offset:{slot*8192 + kt*4096}", rd=(("K", slot), f"K{tile}"))


def rd_v(tile, t, sec):
    slot = tile % R
    return I(f"ds_read_b64_tr_b16 {rr('a', VF(tile & 1, t) + 2*sec, 2)}, v{VA(t)} offset:{slot*8192 + sec*4096}", rd=(("V", slot), f"V{tile}"))


def st_dma_w(stage, i):
    return I(f"buffer_load_dwordx4 v{WV(i)}, {srd(sW)}, s{sWOFF} offen offset:{i*1024} lds", tag=f"S{stage}", wr=([("SB", stage % 4)], f"S{stage}"))


def st_dma_x(stage, qt):
    return I(f"buffer_load_dwordx4 v{XV(qt)}, {srd(sX)}, s{sXOFF} offen offset:{qt*1024} lds", tag=f"S{stage}", wr=([("SB", stage % 4)], f"S{stage}"))


def rd_a(stage, T, sec):
    return I(f"ds_read_b64_tr_b16 {rr('a', AF(T) + 2*sec, 2)}, v{AA(T & 7)} offset:{sec*2048 + (T >> 3)*256}", rd=(("SB", stage % 4), f"S{stage}"))


def rd_x(stage, qt):
    return I(f"ds_read_b128 {rr('a', XF(stage & 1, qt))}, v{XA} offset:{qt*1024}", rd=(("SB", stage % 4), f"S{stage}"))


def p1_step(kk, kvq=None, loop_end=False):
    mf = []
    for T in range(16):
        for qt in range(4):
            k, b = ACC(T, qt)
            mf.append(f"{MF} {rr(k, b)}, {rr('a', AF(T))}, {rr('a', XF(kk & 1, qt))}, {rr(k, b)}")
    G = Gaps(mf)
    g = 0
    for T in range(8, 16):
        base = (T - 8) // 2 * 6 + (T & 1) * 2
        G.put(base, rd_a(kk, T, 0)); G.put(base + 1, rd_a(kk, T, 1))
    free1 = [4, 10, 16]
    freekv = [4, 5, 10, 11]
    if kk + 3 < 16:
        for n, qt in enumerate((1, 2, 3)):
            G.put(free1[n], st_dma_x(kk + 3, qt))
        G.put(17, f"s_add_u32 s{sXOFF}, s{sXOFF}, 64")
        freekv = []
    free1 = freekv
    last = kk == 15
    if not last:
        G.put(22, f"s_sub_u32 s{sDELTA}, s{sN1}, s{sCUR}")
        for u in range(8):
            G.put(23 + u // 2 * 1 + 0, f"v_add_u32 v{AA(u)}, s{sDELTA}, v{AA(u)}")
        G.put(27, f"v_add_u32 v{XA}, s{sDELTA}, v{XA}")
        G.put(23, f"s_mov_b32 s{sDMA}, s{sCUR}")
        G.put(24, f"s_mov_b32 s{sCUR}, s{sN1}")
        G.put(25, f"s_mov_b32 s{sN1}, s{sN2}")
        G.put(27, f"s_mov_b32 s{sN2}, s{sN3}")
        G.put(28, f"s_mov_b32 s{sN3}, s{sDMA}")
    G.put(30, WAIT(lgkm=0, vm=[f"S{kk+1}"] if not last else None))
    G.put(31, "s_barrier")
    if not last:
        for m in range(4):
            base = 32 + 8 * m
            G.put(base, rd_x(kk + 1, m))
            for h in range(2):
                T = 2 * m + h
                G.put(base + 1 + 2 * h, rd_a(kk + 1, T, 0)); G.put(base + 2 + 2 * h, rd_a(kk + 1, T, 1))
    free2 = [37, 39, 45, 47, 53, 55, 61, 62]
    if kk + 4 < 16:
        G.put(36, f"s_add_u32 m0, s{sDMA}, 16384")
        for n, gg in enumerate((37, 45, 47, 53)):
            G.put(gg, st_dma_w(kk + 4, n))
        G.put(54, f"s_add_u32 s{sWOFF}, s{sWOFF}, 262144")
        G.put(55, f"s_mov_b32 m0, s{sDMA}")
        G.put(61, st_dma_x(kk + 4, 0))
        free2 = []
    if kvq is not None:
        for free, minbar in ((free1, kk - 1), (free2, kk)):
            while len(free) >= 2 and kvq and kvq[0][0] <= minbar:
                _, grp = kvq.pop(0)
                g0, g1 = free.pop(0), free.pop(0)
                G.put(g0 - 1, grp[0]); G.put(g0, grp[1]); G.put(g1, grp[2]); G.put(g1 + 1, grp[3])
    if not last:
        G.put(62, WAIT(lgkm="auto"))
        G.put(11, WAIT(lgkm="auto"))
    else:
        G.put(11, WAIT(lgkm="auto"))
    if loop_end:
        G.put(58, f"s_add_u32 s{sCNT}, s{sCNT}, 1")
        G.put(63, f"s_cmp_lt_u32 s{sCNT}, 6")
    out = G.emit()
    if loop_end:
        out += mk("s_cbranch_scc1 L_p1loop")
    return out


MSUM = (1, 3)


def qk_chain(tile, qt, kt, czero=False):
    d = S(qt, 4 * kt)
    r = []
    for j in range(4):
        c = ("0" if czero else rr("v", NM(qt))) if j == 0 else rr("v", d)
        r.append(f"{MF} {rr('v', d)}, {rr('a', KF(tile & 1, kt, j))}, {rr('a', Q(0, qt, j))}, {c}")
    return r


def sm_exp(qt, e): return f"v_exp_f32 v{S(qt,e)}, v{S(qt,e)}"
def sm_add(qt, e): return f"v_add_f32 v{LV[qt]}, v{LV[qt]}, v{S(qt,e)}"
def sm_cvt(qt, i): return f"v_cvt_pk_bf16_f32 v{P(qt)+i}, v{S(qt,2*i)}, v{S(qt,2*i+1)}"


def epoch(s, first=False, last=False, ctl=None):
    out = []
    reads = [rd_k(s + 2, 0, j) for j in range(4)] + [rd_v(s + 1, t, sec) for t in range(8) for sec in range(2)] + [rd_k(s + 2, 1, j) for j in range(4)]
    for b in range(4):
        pv = []
        for t in range(8):
            o = rr("v", O(b, t))
            pv.append(f"{MF} {o}, {rr('a', VF(s & 1, t))}, {rr('v', P(b))}, {'0' if first else o}")
        if b in MSUM:
            l = rr("v", LS[b])
            pv.append(f"{MF} {l}, {rr('v', ONES)}, {rr('v', P(b))}, {'0' if first else l}")
        sq = (b + 1) & 3
        if not last:
            G = Gaps(qk_chain(s + 1, b, 0) + pv + qk_chain(s + 1, b, 1))
            for e in range(8):
                G.put(2 * e, sm_exp(sq, e))
            if b in (0, 2):
                dsg = [1, 3, 5, 7, 11, 15]
                for i in range(4):
                    G.put(4 * i + 3, sm_cvt(sq, i))
                if b == 0:
                    G.put(1, sm_add(0, 6)); G.put(5, sm_add(0, 7))
                d = dma_k(s + R) if b == 0 else dma_v(s + R - 1)
                G.put(8, d[0]); G.put(9, d[1]); G.put(13, d[2]); G.put(14, d[3])
            else:
                dsg = [1, 5, 7, 9, 13, 15]
                for gg, e in ((1, 0), (3, 1), (5, 2), (9, 3), (11, 4), (13, 5)):
                    G.put(gg, sm_add(sq, e))
                for i in range(4):
                    G.put(4 * i + 3, sm_cvt(sq, i))
                if b == 1:
                    G.put(16, sm_add(sq, 6)); G.put(16, sm_add(sq, 7))
            for gg in dsg:
                G.put(gg, reads.pop(0))
            if b == 0:
                G.put(3, WAIT(lgkm="auto")); G.put(11, WAIT(lgkm="auto"))
            if b == 3:
                G.put(15, WAIT(lgkm="auto", vm=[f"K{s+3}", f"V{s+2}"]))
                if ctl == "exit":
                    G.put(12, f"s_add_u32 s{sCNT}, s{sCNT}, 1"); G.put(14, f"s_cmp_eq_u32 s{sCNT}, 4")
                G.put(16, "s_barrier")
            assert G.excess() == 0, (b, G.excess())
            out += G.emit()
        else:
            G = Gaps(pv)
            pre = []
            if b == 0:
                pre += [WAIT(lgkm="auto")]
                G.put(0, sm_add(0, 6)); G.put(1, sm_add(0, 7))
            else:
                pre += ["s_nop 1"]
            n = len(pv)
            if b < 3:
                va = []
                for e in range(8):
                    G.put(e, sm_exp(sq, e))
                    if e >= 1 and sq not in MSUM:
                        G.put(e, sm_add(sq, e - 1))
                    if e >= 2 and e % 2 == 0:
                        G.put(e, sm_cvt(sq, e // 2 - 1))
                tail = ["s_nop 0"] if n == 8 else []
                tl = ([sm_add(sq, 7)] if sq not in MSUM else []) + [sm_cvt(sq, 3)]
                if n == 9:
                    G.put(8, tl); tl = []
            else:
                tail, tl = [], []
            for gg in range(6):
                G.put(gg + 1, reads.pop(0))
            if b in (0, 2):
                d = dma_k(s + R) if b == 0 else dma_v(s + R - 1)
                pre.insert(0, d[0]); G.put(0, d[1]); G.put(7, d[2]); tl = tl + [d[3]]
            out += mk(pre) + G.emit() + mk(tail) + mk(tl)
            if b == 3:
                out += [WAIT(lgkm=0, vm=[f"K{s+3}", f"V{s+2}"]), I("s_barrier")]
    if ctl == "exit":
        out += mk("s_cbranch_scc1 L_last")
    if ctl == "back":
        out += mk("s_branch L_loop")
    return out


def xreduce(reg, tmp, op):
    return [f"v_mov_b32 v{tmp}, v{reg}", "s_nop 1", f"v_permlane16_swap_b32 v{reg}, v{tmp}", f"{op} v{reg}, v{reg}, v{tmp}",
            f"v_mov_b32 v{tmp}, v{reg}", "s_nop 1", f"v_permlane32_swap_b32 v{reg}, v{tmp}", f"{op} v{reg}, v{reg}, v{tmp}"]


def head_prologue(s0):
    mf = []
    for qt in range(4):
        mf += qk_chain(s0, qt, 0, True) + qk_chain(s0, qt, 1, True)
    G = Gaps(mf)

    def maxops(qt):
        m, t = TMP + 2 * qt, TMP + 2 * qt + 1
        r = [f"v_max3_f32 v{m}, v{S(qt,0)}, v{S(qt,1)}, v{MG(qt)}", f"v_max3_f32 v{t}, v{S(qt,2)}, v{S(qt,3)}, v{S(qt,4)}",
             f"v_max3_f32 v{m}, v{m}, v{S(qt,5)}, v{S(qt,6)}", f"v_max3_f32 v{m}, v{m}, v{t}, v{S(qt,7)}"]
        r += xreduce(m, t, "v_max_f32")
        r += [f"v_sub_f32 v{S(qt,e)}, v{S(qt,e)}, v{m}" for e in range(8)]
        r += [f"v_sub_f32 v{NM(qt)+i}, 0, v{m}" for i in range(4)]
        return r
    G.put(0, f"s_mov_b32 s{sCNT}, 0")
    G.put(0, f"v_mov_b32 v{LV[0]}, 0"); G.put(0, f"v_mov_b32 v{LV[2]}, 0")
    out = mk([WAIT(lgkm="auto")])
    sm0 = []
    for e in range(8):
        sm0.append(sm_exp(0, e))
        if 1 <= e <= 6:
            sm0.append(sm_add(0, e - 1))
        if e >= 2 and e % 2 == 0:
            sm0.append(sm_cvt(0, e // 2 - 1))
    sm0 += ["s_nop 0", sm_cvt(0, 3)]
    stream = [(15, x) for x in maxops(0)] + [(19, x) for x in maxops(1)] + [(19, x) for x in sm0] + [(27, x) for x in maxops(2)] + [(99, x) for x in maxops(3)]
    seq = []
    si = 0
    for g in range(32):
        seq.append(G.mf[g]); seq += G.sc[g] + G.va[g]
        budget = 3
        while si < len(stream) and stream[si][0] <= g and budget > 0:
            seq += mk(stream[si][1]); si += 1; budget -= 1
    rest = [x for _, x in stream[si:]]
    n_before3 = len([1 for gg, _ in stream[si:] if gg != 99])
    if n_before3 < 8:
        seq += mk(f"s_nop {7 - n_before3}")
    seq += mk(rest)
    seq += mk("s_nop 1")
    return out + seq


def head_epilogue():
    o = []
    o += ["s_nop 7"]
    o += xreduce(LV[0], TMP, "v_add_f32") + xreduce(LV[2], TMP + 1, "v_add_f32")
    lreg = {0: LV[0], 1: LS[1], 2: LV[2], 3: LS[3]}
    o += [f"v_maximum3_f32 v{TMP}, v{lreg[0]}, v{lreg[1]}, v{lreg[2]}",
          f"v_maximum3_f32 v{TMP}, v{TMP}, v{lreg[3]}, v{lreg[3]}",
          f"v_cmp_nge_f32 vcc, s{sTH}, v{TMP}"]
    for qt in range(4):
        o.append(f"v_rcp_f32 v{lreg[qt]}, v{lreg[qt]}")
    o += [f"s_or_b32 s{sT0}, vcc_lo, vcc_hi", f"s_lshl_b32 s{sT1}, s{sWAVE}, 2", f"s_add_u32 s{sT1}, s{sT1}, {FLAG}",
          f"v_mov_b32 v{TMP}, s{sT0}", f"v_mov_b32 v{TMP+1}, s{sT1}", f"ds_write_b32 v{TMP+1}, v{TMP}",
          f"s_mov_b32 s{sT2}, s{sOOFF}"]
    n = 0
    for qt in range(4):
        if qt == 3:
            o += [f"s_cmp_eq_u32 s{sWAVE}, 3", "s_cbranch_scc1 L_skipst"]
        for u in range(4):
            b = O(qt, 2 * u)
            t = TMP + 4 + 4 * (n % 3); n += 1
            for i in range(4):
                o.append(f"v_pk_mul_f32 v[{b+2*i}:{b+2*i+1}], v[{b+2*i}:{b+2*i+1}], v[{lreg[qt]}:{lreg[qt]+1}] op_sel_hi:[1,0]")
            for i in range(4):
                o.append(f"v_cvt_pk_bf16_f32 v{t+i}, v{b+2*i}, v{b+2*i+1}")
            o.append(I(f"buffer_store_dwordx4 {rr('v', t)}, v{OVOFF}, {srd(sO)}, s{sT2} offen offset:{u*1024}", tag="ST"))
        o.append(f"s_add_u32 s{sT2}, s{sT2}, {128*1024}")
    o += ["L_skipst:", "s_waitcnt lgkmcnt(0)", "s_barrier",
          f"v_mov_b32 v{TMP+1}, {FLAG}", f"ds_read_b128 {rr('v', S(0,0))}, v{TMP+1}", "s_waitcnt lgkmcnt(0)",
          f"v_or3_b32 v{TMP}, v{S(0,0)}, v{S(0,1)}, v{S(0,2)}", f"v_or_b32 v{TMP}, v{TMP}, v{S(0,3)}", "s_nop 0",
          f"v_readfirstlane_b32 s{sT0}, v{TMP}", "s_nop 3",
          f"s_andn2_b32 s{sT0}, s{sT0}, s{sRETRY}",
          "s_cbranch_scc1 L_fallback"]
    return mk(o)


def mg_init():
    return [f"v_mov_b32 v{MG(0)}, 0xff800000", f"v_mov_b32 v{MG(1)}, 0xff800000", f"v_mov_b32 v{MG(2)}, 0xff800000",
            f"s_cmp_eq_u32 s{sWAVE}, 3", f"s_cselect_b32 s{sT0}, 0x43480000, 0", f"s_cselect_b32 s{sT1}, 0, 0xff800000",
            f"s_or_b32 s{sT0}, s{sT0}, s{sT1}", f"v_mov_b32 v{MG(3)}, s{sT0}"]


def prime_reads(s0):
    r = [rd_k(s0, kt, j) for kt in range(2) for j in range(4)]
    r += [rd_k(s0 + 1, 0, j) for j in range(4)] + [rd_v(s0, t, sec) for t in range(8) for sec in range(2)] + [rd_k(s0 + 1, 1, j) for j in range(4)]
    return r


def conversion():
    o = ["s_nop 7"]
    order = [(hh, j, qt) for hh in range(2) for j in range(4) for qt in range(4)]
    moved = {}

    def src(T, qt):
        k, b = ACC(T, qt)
        return b if k == "v" else moved[(T, qt)]
    for n, (hh, j, qt) in enumerate(order):
        if n == 16:
            i = 0
            for T in (14, 15):
                for q2 in range(4):
                    k, b = ACC(T, q2)
                    moved[(T, q2)] = 32 + 4 * i
                    o += [f"v_accvgpr_read_b32 v{32+4*i+x}, a{b+x}" for x in range(4)]
                    i += 1
        b0, b1 = src(hh * 8 + 2 * j, qt), src(hh * 8 + 2 * j + 1, qt)
        for b in (b0, b1):
            o += [f"v_pk_mul_f32 v[{b}:{b+1}], v[{b}:{b+1}], s[{sC}:{sC+1}]", f"v_pk_mul_f32 v[{b+2}:{b+3}], v[{b+2}:{b+3}], s[{sC}:{sC+1}]"]
        o += [f"v_cvt_pk_bf16_f32 v{b0}, v{b0}, v{b0+1}", f"v_cvt_pk_bf16_f32 v{b1}, v{b1}, v{b1+1}",
              f"v_cvt_pk_bf16_f32 v{b0+1}, v{b0+2}, v{b0+3}", f"v_cvt_pk_bf16_f32 v{b1+1}, v{b1+2}, v{b1+3}",
              f"v_permlane16_swap_b32 v{b0}, v{b1}", "s_nop 0", f"v_permlane16_swap_b32 v{b0+1}, v{b1+1}"]
        q = Q(hh, qt, j)
        o += [f"v_accvgpr_write_b32 a{q}, v{b0}", f"v_accvgpr_write_b32 a{q+2}, v{b1}",
              f"v_accvgpr_write_b32 a{q+1}, v{b0+1}", f"v_accvgpr_write_b32 a{q+3}, v{b1+1}"]
    return mk(o)


def p2_addr():
    o = f"""
v_and_b32 v1, 15, v0
v_lshrrev_b32 v2, 4, v0
v_lshrrev_b32 v3, 1, v2
v_and_b32 v4, 1, v2
v_lshl_or_b32 v3, v4, 1, v3
v_xor_b32 v3, v3, v1
v_lshlrev_b32 v3, 4, v3
v_lshl_add_u32 v{KA(0)}, v1, 8, v3
v_xor_b32 v{KA(1)}, 64, v{KA(0)}
v_xor_b32 v{KA(2)}, 0x80, v{KA(0)}
v_xor_b32 v{KA(3)}, 0xc0, v{KA(0)}
v_lshrrev_b32 v3, 2, v0
v_and_b32 v4, 3, v0
v_and_b32 v5, 7, v3
v_lshlrev_b32 v6, 8, v3
v_lshl_add_u32 v6, v5, 5, v6
v_lshl_add_u32 v6, v4, 3, v6
v_add_u32 v{VA(0)}, {VBASE}, v6
"""
    for t in range(1, 8):
        o += f"v_xor_b32 v{VA(t)}, {t<<5}, v{VA(0)}\n"
    return mk(o)


def p2_consts():
    o = f"""
v_and_b32 v4, 3, v0
v_cmp_eq_u32 vcc, 0, v4
v_mov_b32 v5, 0x3f803f80
s_nop 0
v_cndmask_b32 v{ONES}, 0, v5, vcc
v_cndmask_b32 v{ONES+1}, 0, v5, vcc
v_cndmask_b32 v{ONES+2}, 0, v5, vcc
v_cndmask_b32 v{ONES+3}, 0, v5, vcc
"""
    return mk(o) + mk(mg_init())


def build(opts):
    mapping = opts.get("mapping", "A")
    ts = opts.get("ts", False)
    pg = Prog()
    T = "main"

    def stamp(i):
        return mk(f"s_memtime s[{sTS+2*i}:{sTS+2*i+1}]") if ts else []
    if mapping == "A":
        mp = f"""s_and_b32 s{sT1}, s2, 3
s_lshl_b32 s{sT1}, s{sT1}, 2
s_bfe_u32 s{sT2}, s2, 0x20003
s_add_u32 s{sT1}, s{sT1}, s{sT2}
s_lshr_b32 s{sT2}, s2, 5                  ; batch
"""
    else:
        mp = f"""s_bfe_u32 s{sT1}, s2, 0x40003
s_and_b32 s{sT2}, s2, 3
s_lshl_b32 s{sT2}, s{sT2}, 1
s_lshr_b32 s{sT3}, s2, 7
s_add_u32 s{sT2}, s{sT2}, s{sT3}          ; batch
"""
    tsinit = "s_memtime s[66:67]\ns_memrealtime s[68:69]" if ts else ""
    init = f"""
s_cmp_ge_u32 s2, 256
s_cbranch_scc1 L_end
s_bfe_u32 s{sT0}, s2, 0x10002             ; branch
s_mul_i32 s3, s{sT0}, 40
s_add_u32 s{sBAD}, s0, s3
s_addc_u32 s{sBAD+1}, s1, 0
s_load_dwordx8 s[56:63], s[{sBAD}:{sBAD+1}], 0     ; x, K, V, wq
s_load_dwordx2 s[64:65], s[0:1], 96                ; ws
{tsinit}
{mp}
v_lshrrev_b32 v1, 6, v0
v_and_b32 v0, 63, v0
v_readfirstlane_b32 s{sWAVE}, v1
v_lshrrev_b32 v1, 2, v0
v_and_b32 v2, 3, v0
v_lshrrev_b32 v3, 4, v0
v_lshlrev_b32 v4, 1, v3
v_and_b32 v4, 2, v4
v_lshrrev_b32 v5, 1, v3
v_mul_u32_u24 v5, 3, v5
v_xor_b32 v4, v4, v5
v_xor_b32 v4, v4, v2
v_lshlrev_b32 v4, 4, v4
v_lshl_add_u32 v4, v1, 10, v4
s_lshl_b32 s3, s{sWAVE}, 16
v_add_u32 v{XV(0)}, s3, v4
v_add_u32 v{XV(1)}, {15360}, v{XV(0)}
v_add_u32 v{XV(2)}, {2*15360}, v{XV(0)}
v_add_u32 v{XV(3)}, {3*15360}, v{XV(0)}
v_lshrrev_b32 v4, 5, v0
v_and_b32 v5, 31, v0
s_and_b32 s3, s{sWAVE}, 1
s_lshl_b32 s3, s3, 3
v_lshl_or_b32 v6, v4, 1, s3
v_xor_b32 v5, v5, v6
v_lshlrev_b32 v5, 4, v5
v_lshl_add_u32 v5, v4, 13, v5
s_lshl_b32 s3, s{sWAVE}, 16
v_add_u32 v{WV(0)}, s3, v5
v_xor_b32 v6, 64, v{WV(0)}
v_add_u32 v{WV(1)}, {15360}, v6
v_add_u32 v{WV(2)}, {2*15360}, v{WV(0)}
v_add_u32 v{WV(3)}, {3*15360}, v6
s_lshl_b32 s{sKVL}, s{sWAVE}, 11
s_lshl_b32 s3, s{sWAVE}, 12
s_add_u32 s{sCUR}, s3, {SB[0]}
s_add_u32 s{sN1}, s3, {SB[1]}
s_add_u32 s{sN2}, s3, {SB[2]}
s_add_u32 s{sN3}, s3, {SB[3]}
s_mov_b32 s{sXOFF}, 0
s_lshl_b32 s{sWOFF}, s{sT1}, 9
s_mul_i32 s3, s{sT2}, 245760
s_waitcnt lgkmcnt(0)
s_add_u32 s{sX}, s56, s3
s_addc_u32 s{sX+1}, s57, 0
s_mov_b32 s{sX+2}, 245760
s_mov_b32 s{sX+3}, 0x20000
s_mov_b32 s{sW}, s62
s_mov_b32 s{sW+1}, s63
s_mov_b32 s{sW+2}, 0x400000
s_mov_b32 s{sW+3}, 0x20000
"""
    seq = mk(init) + stamp(0)
    bases = [sCUR, sN1, sN2, sN3]
    for st in range(4):
        seq += mk(f"s_add_u32 m0, s{bases[st]}, 16384\ns_nop 0")
        seq += [st_dma_w(st, i) for i in range(4)]
        seq += mk(f"s_mov_b32 m0, s{bases[st]}\ns_add_u32 s{sWOFF}, s{sWOFF}, 262144")
        seq += [st_dma_x(st, qt) for qt in range(4 if st < 3 else 1)]
        if st < 3:
            seq += mk(f"s_add_u32 s{sXOFF}, s{sXOFF}, 64")
    rest = f"""
s_lshl_b32 s3, s{sT2}, 4
s_add_u32 s3, s3, s{sT1}
s_lshl_b32 s3, s3, 19
s_add_u32 s{sK}, s58, s3
s_addc_u32 s{sK+1}, s59, 0
s_mov_b32 s{sK+2}, 0x80000
s_mov_b32 s{sK+3}, 0x20000
s_add_u32 s{sV}, s60, s3
s_addc_u32 s{sV+1}, s61, 0
s_mov_b32 s{sV+2}, 0x80000
s_mov_b32 s{sV+3}, 0x20000
s_mul_i32 s3, s{sT0}, {OWS_BRANCH}
s_add_u32 s{sO}, s64, s3
s_addc_u32 s{sO+1}, s65, 0
s_mov_b32 s{sO+2}, {OWS_BRANCH}
s_mov_b32 s{sO+3}, 0x20000
s_mul_i32 s3, s{sT2}, 15
s_lshl_b32 s{sT3}, s{sWAVE}, 2
s_add_u32 s3, s3, s{sT3}
s_lshl_b32 s3, s3, 17
s_lshl_b32 s{sT3}, s{sT1}, 13
s_add_u32 s{sOOFF}, s3, s{sT3}
s_mov_b32 s{sKOFF}, s{sKVL}
s_mov_b32 s{sVOFF}, s{sKVL}
s_mov_b32 s{sC}, {f2u(QSCALE):#x}
s_mov_b32 s{sC+1}, {f2u(QSCALE):#x}
s_mov_b32 s{sTH}, {f2u(LTHRESH):#x}
s_mov_b32 s{sHEAD}, 0
s_mov_b32 s{sRETRY}, 0
s_mov_b32 s{sCNT}, 0
v_lshlrev_b32 v{OVOFF}, 4, v0
v_and_b32 v1, 15, v0
v_lshrrev_b32 v2, 4, v0
s_lshl_b32 s3, s{sWAVE}, 3
s_and_b32 s3, s3, 15
v_add_u32 v3, s3, v2
v_xor_b32 v4, v1, v3
v_lshlrev_b32 v4, 4, v4
v_lshl_add_u32 v{KV0}, v2, 8, v4
v_xor_b32 v{KV1}, 64, v{KV0}
v_lshlrev_b32 v3, 1, v2
v_xor_b32 v4, v1, v3
v_lshlrev_b32 v4, 4, v4
v_lshl_add_u32 v{VV0}, v2, 8, v4
v_xor_b32 v{VV1}, 0x80, v{VV0}
v_lshrrev_b32 v3, 2, v1
v_lshlrev_b32 v4, 1, v3
v_and_b32 v4, 2, v4
v_lshrrev_b32 v5, 1, v3
v_mul_u32_u24 v5, 3, v5
v_xor_b32 v4, v4, v5
v_xor_b32 v4, v4, v2
v_lshlrev_b32 v4, 4, v4
v_lshl_add_u32 v4, v1, 6, v4
v_add_u32 v{XA}, s{sCUR}, v4
v_bfe_u32 v3, v0, 2, 2
v_and_b32 v4, 3, v0
v_and_b32 v5, 1, v2
v_lshl_or_b32 v5, v5, 2, v3
v_lshl_add_u32 v6, v2, 3, v3
v_lshlrev_b32 v6, 9, v6
v_lshl_add_u32 v6, v5, 5, v6
v_lshl_add_u32 v6, v4, 3, v6
v_add_u32 v{AA(0)}, {SB[0] + 16384}, v6
"""
    seq += mk(rest)
    seq += mk([f"v_xor_b32 v{AA(u)}, {u<<5}, v{AA(0)}" for u in range(1, 8)])
    seq += mk([f"v_mov_b32 v{i}, 0" for i in range(32, 256)])
    seq += mk([f"v_accvgpr_write_b32 a{i}, 0" for i in range(224, 256)])
    seq += [WAIT(vm=["S0"]), I("s_barrier")]
    for m in range(4):
        seq.append(rd_x(0, m))
    for T_ in range(8):
        seq += [rd_a(0, T_, 0), rd_a(0, T_, 1)]
    seq += stamp(1) + [WAIT(lgkm=0 if ts else "auto")]
    pg.visit(T, "init", seq)
    pg.visit(T, "lbl_p1", mk(".p2align 3\nL_p1loop:"))
    for kk in range(12):
        pg.visit(T, f"p1_{kk & 1}", p1_step(kk, loop_end=bool(kk & 1)))
    kvq = [(0, dma_k(0)), (0, dma_k(1)), (12, dma_v(0)), (0, dma_k(2)), (12, dma_v(1)), (0, dma_k(3)), (12, dma_v(2)),
           (13, dma_k(4)), (12, dma_v(3)), (13, dma_k(5)), (14, dma_v(4)), (13, dma_k(6)), (14, dma_v(5)), (13, dma_k(7)), (14, dma_v(6))]
    for kk in range(12, 16):
        pg.visit(T, f"p1_t{kk}", p1_step(kk, kvq=kvq))
    seq = stamp(2)
    for _, grp in kvq:
        seq += [grp[0], I("s_nop 0")] + grp[1:]
    seq += p2_addr()
    seq += [WAIT(vm=["K0", "K1", "V0", "K2", "V1"]), I("s_barrier")] + prime_reads(0)
    seq += conversion() + p2_consts() + stamp(3)
    seq += mk("s_waitcnt lgkmcnt(0)\ns_barrier")
    pg.visit(T, "conv", seq)

    def head(tr, h):
        s0 = 32 * h
        pg.visit(tr, "lbl_head", mk("L_head:"))
        pg.visit(tr, "prologue", head_prologue(s0))
        pg.visit(tr, "ep_first", epoch(s0, first=True))
        pg.visit(tr, "lbl_loop", mk(".p2align 3\nL_loop:"))
        for s in range(1, 31):
            ph = s % 8
            pg.visit(tr, f"ep_{ph}", epoch(s0 + s, ctl={6: "exit", 0: "back"}.get(ph)))
        pg.visit(tr, "lbl_last", mk("L_last:"))
        pg.visit(tr, "ep_last", epoch(s0 + 31, last=True))
        pg.visit(tr, "epilogue", head_epilogue())

    def nexthead():
        o = [f"s_cmp_eq_u32 s{sHEAD}, 1", "s_cbranch_scc1 L_done", f"s_mov_b32 s{sHEAD}, 1", f"s_mov_b32 s{sRETRY}, 0",
             f"s_add_u32 s{sOOFF}, s{sOOFF}, 4096"]
        o += [f"v_accvgpr_mov_b32 a{128+i}, a{192+i}" for i in range(64)]
        o += mg_init() + ["s_nop 1", "s_branch L_head"]
        return mk(o)

    def fallback(h):
        s0 = 32 * h
        o = mk(f"""L_fallback:
s_waitcnt vmcnt(0) lgkmcnt(0)
s_barrier
s_mov_b32 s{sRETRY}, -1
s_lshl_b32 s{sT3}, s{sHEAD}, 18
s_add_u32 s{sT3}, s{sT3}, s{sKVL}
s_mov_b32 s{sKOFF}, s{sT3}
s_mov_b32 s{sCNT}, 0
L_maxloop:""")
        d = dma_k(s0)
        o += [d[0], I("s_nop 0"), d[1], d[2], d[3]] + mk("s_waitcnt vmcnt(0)\ns_barrier")
        o += [rd_k(s0, kt, j) for kt in range(2) for j in range(4)] + mk("s_waitcnt lgkmcnt(0)\ns_barrier")
        for qt in range(4):
            o += mk(qk_chain(s0, qt, 0, True) + qk_chain(s0, qt, 1, True))
        o += mk("s_nop 7")
        for qt in range(4):
            o += mk([f"v_max3_f32 v{MG(qt)}, v{MG(qt)}, v{S(qt,2*i)}, v{S(qt,2*i+1)}" for i in range(4)])
        o += mk(f"""s_add_u32 s{sCNT}, s{sCNT}, 1
s_cmp_lt_u32 s{sCNT}, 32
s_cbranch_scc1 L_maxloop
s_mov_b32 s{sKOFF}, s{sT3}
s_mov_b32 s{sVOFF}, s{sT3}""")
        for t in range(R):
            d = dma_k(s0 + t)
            o += [d[0], I("s_nop 0")] + d[1:]
            if t < R - 1:
                d = dma_v(s0 + t)
                o += [d[0], I("s_nop 0")] + d[1:]
        o += mk("s_waitcnt vmcnt(0)\ns_barrier") + prime_reads(s0) + mk("s_waitcnt lgkmcnt(0)\ns_barrier\ns_branch L_head")
        return o

    head(T, 0)
    pg.visit(T, "next", nexthead())
    head(T, 1)
    T2 = "fb"
    pg.traces[T2] = []
    for name, ins in pg.traces[T]:
        pg.traces[T2].append((name, ins))
        if name == "epilogue":
            break
    pg.visit(T2, "fallback", fallback(0))
    head(T2, 0)
    pg.visit(T2, "next", nexthead())
    head(T2, 1)
    pg.visit(T2, "fallback", fallback(1))
    head(T2, 1)
    end = mk("L_done:")
    if ts:
        end += mk(f"""s_memtime s[{sTS+8}:{sTS+9}]
s_memrealtime s[{sTS+10}:{sTS+11}]
s_waitcnt lgkmcnt(0)
s_add_u32 s{sK}, s64, {1<<27}
s_addc_u32 s{sK+1}, s65, 0
s_mov_b32 s{sK+2}, 0x100000
s_mov_b32 s{sK+3}, 0x20000
v_mov_b32 v32, s{sTS}
v_mov_b32 v33, s{sTS+2}
v_mov_b32 v34, s{sTS+4}
v_mov_b32 v35, s{sTS+6}
v_mov_b32 v36, s{sTS+8}
v_mov_b32 v37, s{sTS+10}
v_mov_b32 v38, s66
v_mov_b32 v39, s68
s_lshl_b32 s3, s2, 7
s_lshl_b32 s{sT0}, s{sWAVE}, 5
s_add_u32 s3, s3, s{sT0}
v_mov_b32 v40, s3
buffer_store_dwordx4 v[32:35], v40, {srd(sK)}, 0 offen
buffer_store_dwordx4 v[36:39], v40, {srd(sK)}, 0 offen offset:16""")
    end += mk("L_end:\ns_endpgm")
    pg.visit(T, "end", end)
    pg.resolve()
    errs = pg.check()
    return pg.text(), errs
```

```python
from asmlib import *

OWS_BRANCH = 120 * 128 * 1024
NS = 4
sO, sW, sD = 4, 8, 12
sWAVE, sOOFF, sWOFF, sL, sCNT, sT0, sT1, sT2, sT3 = 16, 17, 18, 19, 20, 21, 22, 23, 24
srd = lambda b: f"s[{b}:{b+3}]"
AA = lambda n: 8 + n
WV = lambda i: 12 + i
BV = lambda qi: 16 + qi
ACC = lambda qi, n: 32 + (qi * 4 + n) * 4
AF = lambda par, n: 64 + (par * 4 + n) * 4
BF = lambda st, ks, qi: 96 + (((st % NS) * 4 + ks) * 2 + qi) * 4
MF = "v_mfma_f32_16x16x32_bf16"


def rr(k, b, n=4):
    return f"{k}[{b}:{b+n-1}]"


def loads(st, pol):
    r = [I(f"s_add_u32 m0, s{sL}, {(st % NS) * 16384}")]
    w = [I(f"buffer_load_dwordx4 v{WV(i)}, {srd(sW)}, s{sWOFF} offen offset:{i*1024} {pol[1]} lds", tag=f"S{st}", wr=([("W", st % NS)], f"S{st}")) for i in range(4)]
    b = [I(f"buffer_load_dwordx4 {rr('v', BF(st, ks, qi))}, v{BV(qi)}, {srd(sO)}, s{sOOFF} offen offset:{ks*1024} {pol[0]}", tag=f"S{st}") for ks in range(4) for qi in range(2)]
    post = [I(f"s_add_u32 s{sWOFF}, s{sWOFF}, 131072"), I(f"s_add_u32 s{sOOFF}, s{sOOFF}, 4096")]
    return r, w + b, post


def rd_a(st, ks, n, sec):
    return I(f"ds_read_b64_tr_b16 {rr('v', AF(ks & 1, n) + 2*sec, 2)}, v{AA(n)} offset:{(st % NS)*16384 + ks*4096 + sec*2048}", rd=(("W", st % NS), f"S{st}"))


def stage(st, pol, loop_end=False):
    out = [WAIT(vm=[f"S{st}"]), I("s_barrier")]
    ld = None
    if st + 3 < 32:
        pre, ld, post = loads(st + 3, pol)
        out += pre
    out += [rd_a(st, 0, n, sec) for n in range(4) for sec in range(2)]
    if ld is not None:
        out += ld[:4]
        ld = ld[4:]
    mf = []
    for ks in range(4):
        for n in range(4):
            for qi in range(2):
                a = rr("v", ACC(qi, n))
                mf.append(f"{MF} {a}, {rr('v', AF(ks & 1, n))}, {rr('v', BF(st, ks, qi))}, {a}")
    G = Gaps(mf)
    out.append(WAIT(lgkm="auto"))
    for ks in range(4):
        if ks < 3:
            for n in range(4):
                for sec in range(2):
                    G.put(8 * ks + 2 * n + sec, rd_a(st, ks + 1, n, sec))
            G.put(8 * ks + 7, WAIT(lgkm="auto"))
        G.put(8 * ks + 3, WAIT(lgkm="auto"))
    if ld is not None:
        for i, l in enumerate(ld):
            G.put(24 + i, l)
    out += G.emit()
    if ld is not None:
        out += post
    if loop_end:
        out += mk(f"s_add_u32 s{sCNT}, s{sCNT}, 1\ns_cmp_lt_u32 s{sCNT}, 7\ns_cbranch_scc1 L2_loop")
    return out


def build(opts):
    pol = (opts.get("k2o", ""), opts.get("k2w", ""))
    ts = opts.get("ts", False)
    pg = Prog()
    T = "k2"
    init = f"""
s_cmp_ge_u32 s2, 240
s_cbranch_scc1 L2_end
s_bfe_u32 s{sT0}, s2, 0x10002             ; branch
s_mul_i32 s3, s{sT0}, 40
s_add_u32 s30, s0, s3
s_addc_u32 s31, s1, 0
s_load_dwordx2 s[32:33], s[30:31], 32     ; wo
s_load_dwordx2 s[34:35], s[0:1], 80       ; out
s_load_dwordx2 s[36:37], s[0:1], 96       ; ws
{"s_memtime s[66:67]" if ts else ""}
{"s_memrealtime s[68:69]" if ts else ""}
s_and_b32 s3, s2, 3
s_mul_i32 s3, s3, 30
s_lshr_b32 s{sT1}, s2, 3
s_add_u32 s3, s3, s{sT1}
s_lshr_b32 s{sT1}, s3, 3                  ; m tile
s_and_b32 s{sT2}, s3, 7                   ; n tile
v_lshrrev_b32 v1, 6, v0
v_and_b32 v0, 63, v0
v_readfirstlane_b32 s{sWAVE}, v1
v_lshrrev_b32 v1, 3, v0
v_and_b32 v2, 7, v0
v_and_b32 v3, 6, v1
v_xor_b32 v2, v2, v3
v_lshlrev_b32 v2, 4, v2
v_lshl_add_u32 v{WV(0)}, v1, 10, v2
v_add_u32 v{WV(1)}, 7168, v{WV(0)}
v_add_u32 v{WV(2)}, {2*7168}, v{WV(0)}
v_add_u32 v{WV(3)}, {3*7168}, v{WV(0)}
v_lshlrev_b32 v{BV(0)}, 4, v0
v_add_u32 v{BV(1)}, 131072, v{BV(0)}
s_lshl_b32 s{sL}, s{sWAVE}, 12
s_lshl_b32 s{sWOFF}, s{sWAVE}, 15
s_lshl_b32 s3, s{sT2}, 7
s_add_u32 s{sWOFF}, s{sWOFF}, s3
s_lshl_b32 s{sOOFF}, s{sT1}, 20
s_lshl_b32 s3, s{sWAVE}, 18
s_add_u32 s{sOOFF}, s{sOOFF}, s3
s_mul_i32 s3, s{sT0}, {OWS_BRANCH}
s_waitcnt lgkmcnt(0)
s_add_u32 s{sO}, s36, s3
s_addc_u32 s{sO+1}, s37, 0
s_mov_b32 s{sO+2}, {OWS_BRANCH}
s_mov_b32 s{sO+3}, 0x20000
s_mov_b32 s{sW}, s32
s_mov_b32 s{sW+1}, s33
s_mov_b32 s{sW+2}, 0x400000
s_mov_b32 s{sW+3}, 0x20000
"""
    seq = mk(init)
    for st in range(3):
        pre, ld, post = loads(st, pol)
        seq += pre + mk("s_nop 0") + ld + post
    rest = f"""
s_mov_b32 s{sD}, s34
s_mov_b32 s{sD+1}, s35
s_mov_b32 s{sD+2}, {1920*2048}
s_mov_b32 s{sD+3}, 0x20000
s_mov_b32 s{sCNT}, 0
v_lshrrev_b32 v1, 2, v0
v_and_b32 v2, 3, v0
v_bfe_u32 v3, v0, 3, 2
v_lshlrev_b32 v4, 7, v1
v_lshl_add_u32 v4, v3, 5, v4
v_lshl_add_u32 v{AA(0)}, v2, 3, v4
v_xor_b32 v{AA(1)}, 32, v{AA(0)}
v_xor_b32 v{AA(2)}, 64, v{AA(0)}
v_xor_b32 v{AA(3)}, 0x60, v{AA(0)}
v_and_b32 v1, 15, v0
v_lshrrev_b32 v2, 4, v0
v_lshrrev_b32 v3, 1, v2
v_and_b32 v4, 1, v2
v_lshl_or_b32 v3, v4, 1, v3
v_lshlrev_b32 v3, 4, v3
v_lshl_add_u32 v18, v1, 11, v3
s_lshl_b32 s3, s{sT1}, 18
s_lshl_b32 s{sT3}, s{sWAVE}, 16
s_add_u32 s3, s3, s{sT3}
s_lshl_b32 s{sT3}, s{sT0}, 10
s_add_u32 s3, s3, s{sT3}
s_lshl_b32 s{sT3}, s{sT2}, 7
s_add_u32 s{sT3}, s3, s{sT3}
s_add_u32 s{sT2}, s{sT3}, 32768
"""
    seq += mk(rest) + mk([f"v_mov_b32 v{i}, 0" for i in range(32, 64)])
    pg.visit(T, "init2", seq)
    pg.visit(T, "lbl2", mk(".p2align 3\nL2_loop:"))
    for st in range(28):
        pg.visit(T, f"st_{st % 4}", stage(st, pol, loop_end=(st % 4 == 3)))
    for st in range(28, 32):
        pg.visit(T, f"st_t{st}", stage(st, pol))
    o = ["s_nop 7"]
    for qi in range(2):
        for p in range(2):
            b0, b1 = ACC(qi, 2 * p), ACC(qi, 2 * p + 1)
            t = 64 + (qi * 2 + p) * 4
            o += [f"v_cvt_pk_bf16_f32 v{t}, v{b0}, v{b0+1}", f"v_cvt_pk_bf16_f32 v{t+2}, v{b1}, v{b1+1}",
                  f"v_cvt_pk_bf16_f32 v{t+1}, v{b0+2}, v{b0+3}", f"v_cvt_pk_bf16_f32 v{t+3}, v{b1+2}, v{b1+3}",
                  f"v_permlane16_swap_b32 v{t}, v{t+2}", "s_nop 0", f"v_permlane16_swap_b32 v{t+1}, v{t+3}",
                  f"buffer_store_dwordx4 {rr('v', t)}, v18, {srd(sD)}, s{sT2 if qi else sT3} offen offset:{p*64}"]
    if ts:
        o += f"""s_memtime s[70:71]
s_memrealtime s[72:73]
s_waitcnt lgkmcnt(0)
s_add_u32 s{sW}, s36, {(1<<27) + (1<<20)}
s_addc_u32 s{sW+1}, s37, 0
s_mov_b32 s{sW+2}, 0x100000
s_mov_b32 s{sW+3}, 0x20000
v_mov_b32 v32, s66
v_mov_b32 v33, s68
v_mov_b32 v34, s70
v_mov_b32 v35, s72
s_lshl_b32 s3, s2, 6
s_lshl_b32 s{sT0}, s{sWAVE}, 4
s_add_u32 s3, s3, s{sT0}
v_mov_b32 v40, s3
buffer_store_dwordx4 v[32:35], v40, {srd(sW)}, 0 offen""".split("\n")
    o += ["L2_end:", "s_endpgm"]
    pg.visit(T, "end2", mk(o))
    pg.resolve()
    errs = pg.check()
    return pg.text(), errs, (("oproj_kernel", 240, 256, NS * 16384), lambda t: ("oproj_kernel", t, 224, 224))
```

```python
import sys
sys.path.insert(0, "gen")
from common import *
import k1
out = sys.argv[1]
opts = {}
for a in sys.argv[2:]:
    k, _, v = a.partition("=")
    opts[k] = v if v else True
t1, e1 = k1.build(opts)
launches = [("attn_kernel", 256, 256, 163840)]
kernels = [("attn_kernel", t1, 512, 256)]
errs = list(e1)
if "k1only" not in opts:
    import k2
    t2, e2, l2 = k2.build(opts)
    launches.append(l2[0]); kernels.append(l2[1](t2)); errs += e2
open(out, "w").write(whole(launches, kernels))
print("errors:", len(errs))
```

```python
import struct
from asmlib import *

R = 8
KBASE, VBASE, XBASE = 0, 65536, 131072
SB = [65536, 32768, 98304, 131072]
SB_ALIAS = [[("V", i) for i in range(4)], [("K", i) for i in range(4, 8)], [("V", i) for i in range(4, 8)], []]
FLAG = XBASE
OWS_BRANCH = 120 * 128 * 1024
QSCALE = 1.4426950408889634 / (128 ** 0.5)
LTHRESH = float(2 ** 30)


def f2u(f):
    return struct.unpack("<I", struct.pack("<f", f))[0]


sK, sV, sX, sW, sO = 4, 8, 12, 16, 20
sWAVE, sKOFF, sVOFF, sXOFF, sWOFF = 24, 25, 26, 27, 28
sKVL = 29
sCUR, sN1, sN2, sN3, sDMA, sDELTA = 30, 31, 32, 33, 34, 35
sCNT, sHEAD, sRETRY, sOOFF, sT0, sT1, sT2, sT3 = 36, 37, 38, 39, 40, 41, 42, 43
sBAD = 44
sC = 46
sTH = 48
sTS = 70
srd = lambda b: f"s[{b}:{b+3}]"

AA = lambda u: 8 + u
XA = 16
XV = lambda qt: 17 + qt
WV = lambda i: 21 + i
KV0, KV1, VV0, VV1 = 25, 26, 27, 28
KA = lambda j: 8 + j
VA = lambda t: 12 + t
LV = {0: 20, 2: 22}
OVOFF = 29
S = lambda qt, e: 32 + qt * 8 + e
P = lambda qt: 64 + qt * 4
NM = lambda qt: 80 + qt * 4
LS = {1: 96, 3: 100}
ONES = 104
MG = lambda qt: 108 + qt
TMP = 112
O = lambda qt, t: 128 + (qt * 8 + t) * 4
KF = lambda par, kt, j: par * 32 + (kt * 4 + j) * 4
VF = lambda par, t: 64 + par * 32 + t * 4
Q = lambda hh, qt, j: 128 + hh * 64 + (qt * 4 + j) * 4
AF = lambda T: 128 + T * 4
XF = lambda par, qt: 192 + par * 16 + qt * 4


def ACC(T, qt):
    i = T * 4 + qt
    return ("v", 32 + 4 * i) if i < 56 else ("a", 224 + 4 * (i - 56))


def rr(k, b, n=4):
    return f"{k}[{b}:{b+n-1}]"


MF = "v_mfma_f32_16x16x32_bf16"
POL = {"x": "", "wq": "", "ost": "", "kv": "nt"}


def dma_k(tile):
    slot = tile % R
    al = [("SB", 1)] if slot >= 4 else []
    wr = ([("K", slot)] + al, f"K{tile}")
    return [I(f"s_add_u32 m0, s{sKVL}, {KBASE + slot*8192}"),
            I(f"buffer_load_dwordx4 v{KV0}, {srd(sK)}, s{sKOFF} offen {POL['kv']} lds", tag=f"K{tile}", wr=wr),
            I(f"buffer_load_dwordx4 v{KV1}, {srd(sK)}, s{sKOFF} offen offset:1024 {POL['kv']} lds", tag=f"K{tile}", wr=wr),
            I(f"s_add_u32 s{sKOFF}, s{sKOFF}, 8192")]


def dma_v(tile):
    slot = tile % R
    al = [("SB", 2)] if slot >= 4 else [("SB", 0)]
    wr = ([("V", slot)] + al, f"V{tile}")
    return [I(f"s_add_u32 m0, s{sKVL}, {VBASE + slot*8192}"),
            I(f"buffer_load_dwordx4 v{VV0}, {srd(sV)}, s{sVOFF} offen {POL['kv']} lds", tag=f"V{tile}", wr=wr),
            I(f"buffer_load_dwordx4 v{VV1}, {srd(sV)}, s{sVOFF} offen offset:1024 {POL['kv']} lds", tag=f"V{tile}", wr=wr),
            I(f"s_add_u32 s{sVOFF}, s{sVOFF}, 8192")]


def rd_k(tile, kt, j):
    slot = tile % R
    return I(f"ds_read_b128 {rr('a', KF(tile & 1, kt, j))}, v{KA(j)} offset:{slot*8192 + kt*4096}", rd=(("K", slot), f"K{tile}"))


def rd_v(tile, t, sec):
    slot = tile % R
    return I(f"ds_read_b64_tr_b16 {rr('a', VF(tile & 1, t) + 2*sec, 2)}, v{VA(t)} offset:{slot*8192 + sec*4096}", rd=(("V", slot), f"V{tile}"))


def st_dma_w(stage, i):
    return I(f"buffer_load_dwordx4 v{WV(i)}, {srd(sW)}, s{sWOFF} offen offset:{i*1024} {POL['wq']} lds", tag=f"S{stage}", wr=([("SB", stage % 4)], f"S{stage}"))


def st_dma_x(stage, qt):
    return I(f"buffer_load_dwordx4 v{XV(qt)}, {srd(sX)}, s{sXOFF} offen offset:{qt*1024} {POL['x']} lds", tag=f"S{stage}", wr=([("SB", stage % 4)], f"S{stage}"))


def rd_a(stage, T, sec):
    return I(f"ds_read_b64_tr_b16 {rr('a', AF(T) + 2*sec, 2)}, v{AA(T & 7)} offset:{sec*2048 + (T >> 3)*256}", rd=(("SB", stage % 4), f"S{stage}"))


def rd_x(stage, qt):
    return I(f"ds_read_b128 {rr('a', XF(stage & 1, qt))}, v{XA} offset:{qt*1024}", rd=(("SB", stage % 4), f"S{stage}"))


DIAG1 = [False]


def p1_step(kk, kvq=None, loop_end=False):
    mf = []
    for T in range(16):
        for qt in range(4):
            k, b = ACC(T, qt)
            mf.append(f"{MF} {rr(k, b)}, {rr('a', AF(T))}, {rr('a', XF(kk & 1, qt))}, {rr(k, b)}")
    G = Gaps(mf)
    g = 0
    for T in range(8, 16):
        base = (T - 8) // 2 * 6 + (T & 1) * 2
        G.put(base, rd_a(kk, T, 0)); G.put(base + 1, rd_a(kk, T, 1))
    free1 = [4, 10, 16]
    freekv = [4, 16]
    if kk + 3 < 16:
        for n, qt in enumerate((1, 2, 3)):
            G.put(free1[n], st_dma_x(kk + 3, qt))
        G.put(17, f"s_add_u32 s{sXOFF}, s{sXOFF}, 64")
        freekv = []
    free1 = freekv
    last = kk == 15
    if not last:
        G.put(22, f"s_sub_u32 s{sDELTA}, s{sN1}, s{sCUR}")
        for u in range(8):
            G.put(23 + u // 2 * 1 + 0, f"v_add_u32 v{AA(u)}, s{sDELTA}, v{AA(u)}")
        G.put(27, f"v_add_u32 v{XA}, s{sDELTA}, v{XA}")
        G.put(23, f"s_mov_b32 s{sDMA}, s{sCUR}")
        G.put(24, f"s_mov_b32 s{sCUR}, s{sN1}")
        G.put(25, f"s_mov_b32 s{sN1}, s{sN2}")
        G.put(27, f"s_mov_b32 s{sN2}, s{sN3}")
        G.put(28, f"s_mov_b32 s{sN3}, s{sDMA}")
    G.put(30, WAIT(lgkm=0, vm=[f"S{kk+1}"] if not last else None))
    G.put(31, "s_barrier")
    if not last:
        for m in range(4):
            base = 32 + 8 * m
            G.put(base, rd_x(kk + 1, m))
            for h in range(2):
                T = 2 * m + h
                G.put(base + 1 + 2 * h, rd_a(kk + 1, T, 0)); G.put(base + 2 + 2 * h, rd_a(kk + 1, T, 1))
    free2 = [37, 53]
    if kk + 4 < 16:
        G.put(36, f"s_add_u32 m0, s{sDMA}, 16384")
        for n, gg in enumerate((37, 45, 47, 53)):
            G.put(gg, st_dma_w(kk + 4, n))
        G.put(54, f"s_add_u32 s{sWOFF}, s{sWOFF}, 262144")
        G.put(55, f"s_mov_b32 m0, s{sDMA}")
        G.put(61, st_dma_x(kk + 4, 0))
        free2 = []
    if kvq is not None:
        for free, minbar in ((free1, kk - 1), (free2, kk)):
            while len(free) >= 2 and kvq and kvq[0][0] <= minbar:
                _, grp = kvq.pop(0)
                g0, g1 = free.pop(0), free.pop(0)
                G.put(g0 - 1, grp[0]); G.put(g0, grp[1]); G.put(g1, grp[2]); G.put(g1 + 1, grp[3])
    if not last:
        G.put(62, WAIT(lgkm="auto"))
        G.put(11, WAIT(lgkm="auto"))
    else:
        G.put(11, WAIT(lgkm="auto"))
    if DIAG1[0]:
        G.put(0, "s_memtime s[86:87]")
        G.put(29, "v_mov_b32 v7, s86"); G.put(38, "buffer_store_dword v7, v6, s[92:95], 0 offen"); G.put(39, "v_add_u32 v6, 4, v6")
    if loop_end:
        G.put(58, f"s_add_u32 s{sCNT}, s{sCNT}, 1")
        G.put(63, f"s_cmp_lt_u32 s{sCNT}, 6")
    out = G.emit()
    if loop_end:
        out += mk("s_cbranch_scc1 L_p1loop")
    return out


MSUM = (1, 3)
DIAG = [False]


def qk_chain(tile, qt, kt, czero=False):
    d = S(qt, 4 * kt)
    r = []
    for j in range(4):
        c = ("0" if czero else rr("v", NM(qt))) if j == 0 else rr("v", d)
        r.append(f"{MF} {rr('v', d)}, {rr('a', KF(tile & 1, kt, j))}, {rr('a', Q(0, qt, j))}, {c}")
    return r


def sm_exp(qt, e): return f"v_exp_f32 v{S(qt,e)}, v{S(qt,e)}"
def sm_add(qt, e): return f"v_add_f32 v{LV[qt]}, v{LV[qt]}, v{S(qt,e)}"
def sm_cvt(qt, i): return f"v_cvt_pk_bf16_f32 v{P(qt)+i}, v{S(qt,2*i)}, v{S(qt,2*i+1)}"


def epoch(s, first=False, last=False, ctl=None):
    out = []
    reads = [rd_k(s + 2, 0, j) for j in range(4)] + [rd_v(s + 1, t, sec) for t in range(8) for sec in range(2)] + [rd_k(s + 2, 1, j) for j in range(4)]
    for b in range(4):
        pv = []
        for t in range(8):
            o = rr("v", O(b, t))
            pv.append(f"{MF} {o}, {rr('a', VF(s & 1, t))}, {rr('v', P(b))}, {'0' if first else o}")
        if b in MSUM:
            l = rr("v", LS[b])
            pv.append(f"{MF} {l}, {rr('v', ONES)}, {rr('v', P(b))}, {'0' if first else l}")
        sq = (b + 1) & 3
        if not last:
            G = Gaps(qk_chain(s + 1, b, 0) + pv + qk_chain(s + 1, b, 1))
            for e in range(8):
                G.put(2 * e, sm_exp(sq, e))
            if b in (0, 2):
                dsg = [1, 3, 5, 7, 11, 15]
                for i in range(4):
                    G.put(4 * i + 3, sm_cvt(sq, i))
                if b == 0:
                    G.put(1, sm_add(0, 6)); G.put(5, sm_add(0, 7))
                d = dma_k(s + R) if b == 0 else dma_v(s + R - 1)
                G.put(8, d[0]); G.put(9, d[1]); G.put(13, d[2]); G.put(14, d[3])
            else:
                dsg = [1, 5, 7, 9, 13, 15]
                for gg, e in ((1, 0), (3, 1), (5, 2), (9, 3), (11, 4), (13, 5)):
                    G.put(gg, sm_add(sq, e))
                for i in range(4):
                    G.put(4 * i + 3, sm_cvt(sq, i))
                if b == 1:
                    G.put(16, sm_add(sq, 6)); G.put(16, sm_add(sq, 7))
            for gg in dsg:
                G.put(gg, reads.pop(0))
            if b == 0:
                G.put(3, WAIT(lgkm="auto")); G.put(11, WAIT(lgkm="auto"))
            if b == 3:
                G.put(15, WAIT(lgkm="auto", vm=[f"K{s+3}", f"V{s+2}"]))
                if ctl == "exit":
                    G.put(12, f"s_add_u32 s{sCNT}, s{sCNT}, 1"); G.put(14, f"s_cmp_eq_u32 s{sCNT}, 4")
                G.put(16, "s_barrier")
            if DIAG[0]:
                if b == 0:
                    G.put(0, "s_memtime s[86:87]"); G.put(1, "s_memrealtime s[88:89]")
                if b == 3:
                    G.put(2, "v_mov_b32 v30, s86"); G.put(2, "v_mov_b32 v31, s88")
                    G.put(3, "ds_write_b64 v24, v[30:31]"); G.put(4, "v_add_u32 v24, 8, v24")
            else:
                assert G.excess() == 0, (b, G.excess())
            out += G.emit()
        else:
            G = Gaps(pv)
            pre = []
            if b == 0:
                pre += [WAIT(lgkm="auto")]
                G.put(0, sm_add(0, 6)); G.put(1, sm_add(0, 7))
            else:
                pre += ["s_nop 1"]
            n = len(pv)
            if b < 3:
                va = []
                for e in range(8):
                    G.put(e, sm_exp(sq, e))
                    if e >= 1 and sq not in MSUM:
                        G.put(e, sm_add(sq, e - 1))
                    if e >= 2 and e % 2 == 0:
                        G.put(e, sm_cvt(sq, e // 2 - 1))
                tail = ["s_nop 0"] if n == 8 else []
                tl = ([sm_add(sq, 7)] if sq not in MSUM else []) + [sm_cvt(sq, 3)]
                if n == 9:
                    G.put(8, tl); tl = []
            else:
                tail, tl = [], []
            for gg in range(6):
                G.put(gg + 1, reads.pop(0))
            if b in (0, 2):
                d = dma_k(s + R) if b == 0 else dma_v(s + R - 1)
                pre.insert(0, d[0]); G.put(0, d[1]); G.put(7, d[2]); tl = tl + [d[3]]
            out += mk(pre) + G.emit() + mk(tail) + mk(tl)
            if b == 3:
                out += [WAIT(lgkm=0, vm=[f"K{s+3}", f"V{s+2}"]), I("s_barrier")]
    if ctl == "exit":
        out += mk("s_cbranch_scc1 L_last")
    if ctl == "back":
        out += mk("s_branch L_loop")
    return out


def xreduce(reg, tmp, op):
    return [f"v_mov_b32 v{tmp}, v{reg}", "s_nop 1", f"v_permlane16_swap_b32 v{reg}, v{tmp}", f"{op} v{reg}, v{reg}, v{tmp}",
            f"v_mov_b32 v{tmp}, v{reg}", "s_nop 1", f"v_permlane32_swap_b32 v{reg}, v{tmp}", f"{op} v{reg}, v{reg}, v{tmp}"]


def head_prologue(s0):
    mf = []
    for qt in range(4):
        mf += qk_chain(s0, qt, 0, True) + qk_chain(s0, qt, 1, True)
    G = Gaps(mf)

    def maxops(qt):
        m, t = TMP + 2 * qt, TMP + 2 * qt + 1
        r = [f"v_max3_f32 v{m}, v{S(qt,0)}, v{S(qt,1)}, v{MG(qt)}", f"v_max3_f32 v{t}, v{S(qt,2)}, v{S(qt,3)}, v{S(qt,4)}",
             f"v_max3_f32 v{m}, v{m}, v{S(qt,5)}, v{S(qt,6)}", f"v_max3_f32 v{m}, v{m}, v{t}, v{S(qt,7)}"]
        r += xreduce(m, t, "v_max_f32")
        r += [f"v_sub_f32 v{S(qt,e)}, v{S(qt,e)}, v{m}" for e in range(8)]
        r += [f"v_sub_f32 v{NM(qt)+i}, 0, v{m}" for i in range(4)]
        return r
    G.put(0, f"s_mov_b32 s{sCNT}, 0")
    G.put(0, f"v_mov_b32 v{LV[0]}, 0"); G.put(0, f"v_mov_b32 v{LV[2]}, 0")
    out = mk([WAIT(lgkm="auto")])
    sm0 = []
    for e in range(8):
        sm0.append(sm_exp(0, e))
        if 1 <= e <= 6:
            sm0.append(sm_add(0, e - 1))
        if e >= 2 and e % 2 == 0:
            sm0.append(sm_cvt(0, e // 2 - 1))
    sm0 += ["s_nop 0", sm_cvt(0, 3)]
    stream = [(15, x) for x in maxops(0)] + [(19, x) for x in maxops(1)] + [(19, x) for x in sm0] + [(27, x) for x in maxops(2)] + [(99, x) for x in maxops(3)]
    seq = []
    si = 0
    for g in range(32):
        seq.append(G.mf[g]); seq += G.sc[g] + G.va[g]
        budget = 3
        while si < len(stream) and stream[si][0] <= g and budget > 0:
            seq += mk(stream[si][1]); si += 1; budget -= 1
    rest = [x for _, x in stream[si:]]
    n_before3 = len([1 for gg, _ in stream[si:] if gg != 99])
    if n_before3 < 8:
        seq += mk(f"s_nop {7 - n_before3}")
    seq += mk(rest)
    seq += mk("s_nop 1")
    return out + seq


def head_epilogue():
    o = []
    o += ["s_nop 7"]
    o += xreduce(LV[0], TMP, "v_add_f32") + xreduce(LV[2], TMP + 1, "v_add_f32")
    lreg = {0: LV[0], 1: LS[1], 2: LV[2], 3: LS[3]}
    o += [f"v_maximum3_f32 v{TMP}, v{lreg[0]}, v{lreg[1]}, v{lreg[2]}",
          f"v_maximum3_f32 v{TMP}, v{TMP}, v{lreg[3]}, v{lreg[3]}",
          f"v_cmp_nge_f32 vcc, s{sTH}, v{TMP}"]
    for qt in range(4):
        o.append(f"v_rcp_f32 v{lreg[qt]}, v{lreg[qt]}")
    o += [f"s_or_b32 s{sT0}, vcc_lo, vcc_hi", f"s_lshl_b32 s{sT1}, s{sWAVE}, 2", f"s_add_u32 s{sT1}, s{sT1}, {FLAG}",
          f"v_mov_b32 v{TMP}, s{sT0}", f"v_mov_b32 v{TMP+1}, s{sT1}", f"ds_write_b32 v{TMP+1}, v{TMP}",
          f"s_mov_b32 s{sT2}, s{sOOFF}"]
    n = 0
    for qt in range(4):
        if qt == 3:
            o += [f"s_cmp_eq_u32 s{sWAVE}, 3", "s_cbranch_scc1 L_skipst"]
        for u in range(4):
            b = O(qt, 2 * u)
            t = TMP + 4 + 4 * (n % 3); n += 1
            for i in range(4):
                o.append(f"v_pk_mul_f32 v[{b+2*i}:{b+2*i+1}], v[{b+2*i}:{b+2*i+1}], v[{lreg[qt]}:{lreg[qt]+1}] op_sel_hi:[1,0]")
            for i in range(4):
                o.append(f"v_cvt_pk_bf16_f32 v{t+i}, v{b+2*i}, v{b+2*i+1}")
            o.append(I(f"buffer_store_dwordx4 {rr('v', t)}, v{OVOFF}, {srd(sO)}, s{sT2} offen offset:{u*1024} {POL['ost']}", tag="ST"))
        o.append(f"s_add_u32 s{sT2}, s{sT2}, {128*1024}")
    o += ["L_skipst:", "s_waitcnt lgkmcnt(0)", "s_barrier",
          f"v_mov_b32 v{TMP+1}, {FLAG}", f"ds_read_b128 {rr('v', S(0,0))}, v{TMP+1}", "s_waitcnt lgkmcnt(0)",
          f"v_or3_b32 v{TMP}, v{S(0,0)}, v{S(0,1)}, v{S(0,2)}", f"v_or_b32 v{TMP}, v{TMP}, v{S(0,3)}", "s_nop 0",
          f"v_readfirstlane_b32 s{sT0}, v{TMP}", "s_nop 3",
          f"s_andn2_b32 s{sT0}, s{sT0}, s{sRETRY}",
          "s_cbranch_scc1 L_fallback"]
    return mk(o)


def mg_init():
    return [f"v_mov_b32 v{MG(0)}, 0xff800000", f"v_mov_b32 v{MG(1)}, 0xff800000", f"v_mov_b32 v{MG(2)}, 0xff800000",
            f"s_cmp_eq_u32 s{sWAVE}, 3", f"s_cselect_b32 s{sT0}, 0x43480000, 0", f"s_cselect_b32 s{sT1}, 0, 0xff800000",
            f"s_or_b32 s{sT0}, s{sT0}, s{sT1}", f"v_mov_b32 v{MG(3)}, s{sT0}"]


def prime_reads(s0):
    r = [rd_k(s0, kt, j) for kt in range(2) for j in range(4)]
    r += [rd_k(s0 + 1, 0, j) for j in range(4)] + [rd_v(s0, t, sec) for t in range(8) for sec in range(2)] + [rd_k(s0 + 1, 1, j) for j in range(4)]
    return r


def conversion():
    o = ["s_nop 7"]
    order = [(hh, j, qt) for hh in range(2) for j in range(4) for qt in range(4)]
    moved = {}

    def src(T, qt):
        k, b = ACC(T, qt)
        return b if k == "v" else moved[(T, qt)]
    for n, (hh, j, qt) in enumerate(order):
        if n == 16:
            i = 0
            for T in (14, 15):
                for q2 in range(4):
                    k, b = ACC(T, q2)
                    moved[(T, q2)] = 32 + 4 * i
                    o += [f"v_accvgpr_read_b32 v{32+4*i+x}, a{b+x}" for x in range(4)]
                    i += 1
        b0, b1 = src(hh * 8 + 2 * j, qt), src(hh * 8 + 2 * j + 1, qt)
        for b in (b0, b1):
            o += [f"v_pk_mul_f32 v[{b}:{b+1}], v[{b}:{b+1}], s[{sC}:{sC+1}]", f"v_pk_mul_f32 v[{b+2}:{b+3}], v[{b+2}:{b+3}], s[{sC}:{sC+1}]"]
        o += [f"v_cvt_pk_bf16_f32 v{b0}, v{b0}, v{b0+1}", f"v_cvt_pk_bf16_f32 v{b1}, v{b1}, v{b1+1}",
              f"v_cvt_pk_bf16_f32 v{b0+1}, v{b0+2}, v{b0+3}", f"v_cvt_pk_bf16_f32 v{b1+1}, v{b1+2}, v{b1+3}",
              f"v_permlane16_swap_b32 v{b0}, v{b1}", "s_nop 0", f"v_permlane16_swap_b32 v{b0+1}, v{b1+1}"]
        q = Q(hh, qt, j)
        o += [f"v_accvgpr_write_b32 a{q}, v{b0}", f"v_accvgpr_write_b32 a{q+2}, v{b1}",
              f"v_accvgpr_write_b32 a{q+1}, v{b0+1}", f"v_accvgpr_write_b32 a{q+3}, v{b1+1}"]
    return mk(o)


def p2_addr():
    o = f"""
v_and_b32 v1, 15, v0
v_lshrrev_b32 v2, 4, v0
v_lshrrev_b32 v3, 1, v2
v_and_b32 v4, 1, v2
v_lshl_or_b32 v3, v4, 1, v3
v_xor_b32 v3, v3, v1
v_lshlrev_b32 v3, 4, v3
v_lshl_add_u32 v{KA(0)}, v1, 8, v3
v_xor_b32 v{KA(1)}, 64, v{KA(0)}
v_xor_b32 v{KA(2)}, 0x80, v{KA(0)}
v_xor_b32 v{KA(3)}, 0xc0, v{KA(0)}
v_lshrrev_b32 v3, 2, v0
v_and_b32 v4, 3, v0
v_and_b32 v5, 7, v3
v_lshlrev_b32 v6, 8, v3
v_lshl_add_u32 v6, v5, 5, v6
v_lshl_add_u32 v6, v4, 3, v6
v_add_u32 v{VA(0)}, {VBASE}, v6
"""
    for t in range(1, 8):
        o += f"v_xor_b32 v{VA(t)}, {t<<5}, v{VA(0)}\n"
    return mk(o)


def p2_consts():
    o = f"""
v_and_b32 v4, 3, v0
v_cmp_eq_u32 vcc, 0, v4
v_mov_b32 v5, 0x3f803f80
s_nop 0
v_cndmask_b32 v{ONES}, 0, v5, vcc
v_cndmask_b32 v{ONES+1}, 0, v5, vcc
v_cndmask_b32 v{ONES+2}, 0, v5, vcc
v_cndmask_b32 v{ONES+3}, 0, v5, vcc
"""
    return mk(o) + mk(mg_init())


def build(opts):
    for k in POL:
        if k in opts: POL[k] = opts[k].replace("+", " ").replace("-", "")
    mapping = opts.get("mapping", "A")
    ts = opts.get("ts", False)
    DIAG[0] = bool(opts.get("diag"))
    DIAG1[0] = bool(opts.get("diag1"))
    pg = Prog()
    T = "main"

    def stamp(i):
        return mk(f"s_memtime s[{sTS+2*i}:{sTS+2*i+1}]") if ts else []
    if mapping == "A":
        mp = f"""s_and_b32 s{sT1}, s2, 3
s_lshl_b32 s{sT1}, s{sT1}, 2
s_bfe_u32 s{sT2}, s2, 0x20003
s_add_u32 s{sT1}, s{sT1}, s{sT2}
s_lshr_b32 s{sT2}, s2, 5                  ; batch
"""
    else:
        mp = f"""s_bfe_u32 s{sT1}, s2, 0x40003
s_and_b32 s{sT2}, s2, 3
s_lshl_b32 s{sT2}, s{sT2}, 1
s_lshr_b32 s{sT3}, s2, 7
s_add_u32 s{sT2}, s{sT2}, s{sT3}          ; batch
"""
    tsinit = "s_memtime s[66:67]\ns_memrealtime s[68:69]" if ts else ""
    init = f"""
s_cmp_ge_u32 s2, 256
s_cbranch_scc1 L_end
s_bfe_u32 s{sT0}, s2, 0x10002             ; branch
s_mul_i32 s3, s{sT0}, 40
s_add_u32 s{sBAD}, s0, s3
s_addc_u32 s{sBAD+1}, s1, 0
s_load_dwordx8 s[56:63], s[{sBAD}:{sBAD+1}], 0     ; x, K, V, wq
s_load_dwordx2 s[64:65], s[0:1], 96                ; ws
{tsinit}
{mp}
v_lshrrev_b32 v1, 6, v0
v_and_b32 v0, 63, v0
v_readfirstlane_b32 s{sWAVE}, v1
v_lshrrev_b32 v1, 2, v0
v_and_b32 v2, 3, v0
v_lshrrev_b32 v3, 4, v0
v_lshlrev_b32 v4, 1, v3
v_and_b32 v4, 2, v4
v_lshrrev_b32 v5, 1, v3
v_mul_u32_u24 v5, 3, v5
v_xor_b32 v4, v4, v5
v_xor_b32 v4, v4, v2
v_lshlrev_b32 v4, 4, v4
v_lshl_add_u32 v4, v1, 10, v4
s_lshl_b32 s3, s{sWAVE}, 16
v_add_u32 v{XV(0)}, s3, v4
v_add_u32 v{XV(1)}, {15360}, v{XV(0)}
v_add_u32 v{XV(2)}, {2*15360}, v{XV(0)}
v_add_u32 v{XV(3)}, {3*15360}, v{XV(0)}
v_lshrrev_b32 v4, 5, v0
v_and_b32 v5, 31, v0
s_and_b32 s3, s{sWAVE}, 1
s_lshl_b32 s3, s3, 3
v_lshl_or_b32 v6, v4, 1, s3
v_xor_b32 v5, v5, v6
v_lshlrev_b32 v5, 4, v5
v_lshl_add_u32 v5, v4, 13, v5
s_lshl_b32 s3, s{sWAVE}, 16
v_add_u32 v{WV(0)}, s3, v5
v_xor_b32 v6, 64, v{WV(0)}
v_add_u32 v{WV(1)}, {15360}, v6
v_add_u32 v{WV(2)}, {2*15360}, v{WV(0)}
v_add_u32 v{WV(3)}, {3*15360}, v6
s_lshl_b32 s{sKVL}, s{sWAVE}, 11
s_lshl_b32 s3, s{sWAVE}, 12
s_add_u32 s{sCUR}, s3, {SB[0]}
s_add_u32 s{sN1}, s3, {SB[1]}
s_add_u32 s{sN2}, s3, {SB[2]}
s_add_u32 s{sN3}, s3, {SB[3]}
s_mov_b32 s{sXOFF}, 0
s_lshl_b32 s{sWOFF}, s{sT1}, 9
s_mul_i32 s3, s{sT2}, 245760
s_waitcnt lgkmcnt(0)
s_add_u32 s{sX}, s56, s3
s_addc_u32 s{sX+1}, s57, 0
s_mov_b32 s{sX+2}, 245760
s_mov_b32 s{sX+3}, 0x20000
s_mov_b32 s{sW}, s62
s_mov_b32 s{sW+1}, s63
s_mov_b32 s{sW+2}, 0x400000
s_mov_b32 s{sW+3}, 0x20000
"""
    seq = mk(init) + stamp(0)
    bases = [sCUR, sN1, sN2, sN3]
    for st in range(4):
        seq += mk(f"s_add_u32 m0, s{bases[st]}, 16384\ns_nop 0")
        seq += [st_dma_w(st, i) for i in range(4)]
        seq += mk(f"s_mov_b32 m0, s{bases[st]}\ns_add_u32 s{sWOFF}, s{sWOFF}, 262144")
        seq += [st_dma_x(st, qt) for qt in range(4 if st < 3 else 1)]
        if st < 3:
            seq += mk(f"s_add_u32 s{sXOFF}, s{sXOFF}, 64")
    rest = f"""
s_lshl_b32 s3, s{sT2}, 4
s_add_u32 s3, s3, s{sT1}
s_lshl_b32 s3, s3, 19
{"s_and_b32 s3, s3, 0x180000" if opts.get("kvl2") else ""}
s_add_u32 s{sK}, s58, s3
s_addc_u32 s{sK+1}, s59, 0
s_mov_b32 s{sK+2}, 0x80000
s_mov_b32 s{sK+3}, 0x20000
s_add_u32 s{sV}, s60, s3
s_addc_u32 s{sV+1}, s61, 0
s_mov_b32 s{sV+2}, 0x80000
s_mov_b32 s{sV+3}, 0x20000
s_mul_i32 s3, s{sT0}, {OWS_BRANCH}
s_add_u32 s{sO}, s64, s3
s_addc_u32 s{sO+1}, s65, 0
s_mov_b32 s{sO+2}, {OWS_BRANCH}
s_mov_b32 s{sO+3}, 0x20000
s_mul_i32 s3, s{sT2}, 15
s_lshl_b32 s{sT3}, s{sWAVE}, 2
s_add_u32 s3, s3, s{sT3}
s_lshl_b32 s3, s3, 17
s_lshl_b32 s{sT3}, s{sT1}, 13
s_add_u32 s{sOOFF}, s3, s{sT3}
s_mov_b32 s{sKOFF}, s{sKVL}
s_mov_b32 s{sVOFF}, s{sKVL}
s_mov_b32 s{sC}, {f2u(QSCALE):#x}
s_mov_b32 s{sC+1}, {f2u(QSCALE):#x}
s_mov_b32 s{sTH}, {f2u(LTHRESH):#x}
s_mov_b32 s{sHEAD}, 0
s_mov_b32 s{sRETRY}, 0
s_mov_b32 s{sCNT}, 0
v_lshlrev_b32 v{OVOFF}, 4, v0
v_and_b32 v1, 15, v0
v_lshrrev_b32 v2, 4, v0
s_lshl_b32 s3, s{sWAVE}, 3
s_and_b32 s3, s3, 15
v_add_u32 v3, s3, v2
v_xor_b32 v4, v1, v3
v_lshlrev_b32 v4, 4, v4
v_lshl_add_u32 v{KV0}, v2, 8, v4
v_xor_b32 v{KV1}, 64, v{KV0}
v_lshlrev_b32 v3, 1, v2
v_xor_b32 v4, v1, v3
v_lshlrev_b32 v4, 4, v4
v_lshl_add_u32 v{VV0}, v2, 8, v4
v_xor_b32 v{VV1}, 0x80, v{VV0}
v_lshrrev_b32 v3, 2, v1
v_lshlrev_b32 v4, 1, v3
v_and_b32 v4, 2, v4
v_lshrrev_b32 v5, 1, v3
v_mul_u32_u24 v5, 3, v5
v_xor_b32 v4, v4, v5
v_xor_b32 v4, v4, v2
v_lshlrev_b32 v4, 4, v4
v_lshl_add_u32 v4, v1, 6, v4
v_add_u32 v{XA}, s{sCUR}, v4
v_bfe_u32 v3, v0, 2, 2
v_and_b32 v4, 3, v0
v_and_b32 v5, 1, v2
v_lshl_or_b32 v5, v5, 2, v3
v_lshl_add_u32 v6, v2, 3, v3
v_lshlrev_b32 v6, 9, v6
v_lshl_add_u32 v6, v5, 5, v6
v_lshl_add_u32 v6, v4, 3, v6
v_add_u32 v{AA(0)}, {SB[0] + 16384}, v6
"""
    seq += mk(rest)
    if opts.get("pfcode"):
        seq += mk(f"""s_getpc_b64 s[90:91]
L_pc:
s_sub_u32 s90, s90, L_pc-attn_kernel
s_subb_u32 s91, s91, 0
s_lshl_b32 s3, s{sWAVE}, 13
v_lshl_add_u32 v1, v0, 7, s3
v_min_u32 v1, L_codeend-attn_kernel-4, v1
v_add_u32 v2, 0x8000, v1
v_min_u32 v2, L_codeend-attn_kernel-4, v2""")
        seq += [I("global_load_dword v30, v1, s[90:91]", tag="PF"), I("global_load_dword v31, v2, s[90:91]", tag="PF")]
    seq += mk([f"v_xor_b32 v{AA(u)}, {u<<5}, v{AA(0)}" for u in range(1, 8)])
    seq += mk([f"v_mov_b32 v{i}, 0" for i in range(32, 256)])
    seq += mk([f"v_accvgpr_write_b32 a{i}, 0" for i in range(224, 256)])
    if DIAG1[0]:
        seq += mk(f"""s_add_u32 s92, s64, {1<<27}
s_addc_u32 s93, s65, 0
s_mov_b32 s94, 0x100000
s_mov_b32 s95, 0x20000
s_lshl_b32 s3, s2, 10
s_lshl_b32 s{sT0}, s{sWAVE}, 8
s_add_u32 s3, s3, s{sT0}
s_add_u32 s3, s3, 0xc0000
v_mov_b32 v6, s3""")
    seq += [WAIT(vm=["S0"]), I("s_barrier")]
    for m in range(4):
        seq.append(rd_x(0, m))
    for T_ in range(8):
        seq += [rd_a(0, T_, 0), rd_a(0, T_, 1)]
    seq += stamp(1) + [WAIT(lgkm=0 if ts else "auto")]
    pg.visit(T, "init", seq)
    pg.visit(T, "lbl_p1", mk(".p2align 3\nL_p1loop:"))
    for kk in range(12):
        pg.visit(T, f"p1_{kk & 1}", p1_step(kk, loop_end=bool(kk & 1)))
    kvq = [(0, dma_k(0)), (0, dma_k(1)), (12, dma_v(0)), (0, dma_k(2)), (12, dma_v(1)), (0, dma_k(3)), (12, dma_v(2)),
           (13, dma_k(4)), (12, dma_v(3)), (13, dma_k(5)), (14, dma_v(4)), (13, dma_k(6)), (14, dma_v(5)), (13, dma_k(7)), (14, dma_v(6))]
    for kk in range(12, 16):
        pg.visit(T, f"p1_t{kk}", p1_step(kk, kvq=kvq))
    seq = stamp(2)
    seq += p2_addr()
    if opts.get("pfwo"):
        seq += mk(f"""s_load_dwordx2 s[90:91], s[{sBAD}:{sBAD+1}], 32
s_and_b32 s3, s2, 3
s_lshr_b32 s{sT0}, s2, 3
s_lshl_b32 s3, s3, 5
s_add_u32 s3, s3, s{sT0}
s_lshl_b32 s3, s3, 15
s_lshl_b32 s{sT0}, s{sWAVE}, 13
s_add_u32 s3, s3, s{sT0}
v_lshl_add_u32 v1, v0, 7, s3
s_waitcnt lgkmcnt(0)""")
        seq += [I("global_load_dword v30, v1, s[90:91]", tag="PF")]
    seq += [WAIT(vm=["K0", "K1", "V0", "K2", "V1"]), I("s_barrier")] + prime_reads(0)
    cv = conversion()
    n = len(kvq)
    step = len(cv) // (2 * n + 1)
    pos = 8
    for _, grp in kvq:
        cv[pos:pos] = [grp[0], I("s_nop 0"), grp[1]]
        pos += step + 3
        cv[pos:pos] = grp[2:]
        pos += step + 3
    seq += cv + p2_consts() + stamp(3)
    if DIAG[0]:
        seq += mk(f"s_lshl_b32 s3, s{sWAVE}, 10\ns_add_u32 s3, s3, {XBASE + 4096}\nv_mov_b32 v24, s3")
    seq += mk("s_waitcnt lgkmcnt(0)\ns_barrier")
    pg.visit(T, "conv", seq)

    def head(tr, h):
        s0 = 32 * h
        pg.visit(tr, "lbl_head", mk("L_head:"))
        pg.visit(tr, "prologue", head_prologue(s0))
        pg.visit(tr, "ep_first", epoch(s0, first=True))
        pg.visit(tr, "lbl_loop", mk(".p2align 3\nL_loop:"))
        for s in range(1, 31):
            ph = s % 8
            pg.visit(tr, f"ep_{ph}", epoch(s0 + s, ctl={6: "exit", 0: "back"}.get(ph)))
        pg.visit(tr, "lbl_last", mk("L_last:"))
        pg.visit(tr, "ep_last", epoch(s0 + 31, last=True))
        pg.visit(tr, "epilogue", head_epilogue())

    def nexthead():
        o = [f"s_cmp_eq_u32 s{sHEAD}, 1", "s_cbranch_scc1 L_done", f"s_mov_b32 s{sHEAD}, 1", f"s_mov_b32 s{sRETRY}, 0",
             f"s_add_u32 s{sOOFF}, s{sOOFF}, 4096"]
        o += [f"v_accvgpr_mov_b32 a{128+i}, a{192+i}" for i in range(64)]
        o += mg_init() + ["s_nop 1", "s_branch L_head"]
        return mk(o)

    def fallback(h):
        s0 = 32 * h
        o = mk(f"""L_fallback:
s_waitcnt vmcnt(0) lgkmcnt(0)
s_barrier
s_mov_b32 s{sRETRY}, -1
s_lshl_b32 s{sT3}, s{sHEAD}, 18
s_add_u32 s{sT3}, s{sT3}, s{sKVL}
s_mov_b32 s{sKOFF}, s{sT3}
s_mov_b32 s{sCNT}, 0
L_maxloop:""")
        d = dma_k(s0)
        o += [d[0], I("s_nop 0"), d[1], d[2], d[3]] + mk("s_waitcnt vmcnt(0)\ns_barrier")
        o += [rd_k(s0, kt, j) for kt in range(2) for j in range(4)] + mk("s_waitcnt lgkmcnt(0)\ns_barrier")
        for qt in range(4):
            o += mk(qk_chain(s0, qt, 0, True) + qk_chain(s0, qt, 1, True))
        o += mk("s_nop 7")
        for qt in range(4):
            o += mk([f"v_max3_f32 v{MG(qt)}, v{MG(qt)}, v{S(qt,2*i)}, v{S(qt,2*i+1)}" for i in range(4)])
        o += mk(f"""s_add_u32 s{sCNT}, s{sCNT}, 1
s_cmp_lt_u32 s{sCNT}, 32
s_cbranch_scc1 L_maxloop
s_mov_b32 s{sKOFF}, s{sT3}
s_mov_b32 s{sVOFF}, s{sT3}""")
        for t in range(R):
            d = dma_k(s0 + t)
            o += [d[0], I("s_nop 0")] + d[1:]
            if t < R - 1:
                d = dma_v(s0 + t)
                o += [d[0], I("s_nop 0")] + d[1:]
        o += mk("s_waitcnt vmcnt(0)\ns_barrier") + prime_reads(s0) + mk("s_waitcnt lgkmcnt(0)\ns_barrier\ns_branch L_head")
        return o

    head(T, 0)
    pg.visit(T, "next", nexthead())
    head(T, 1)
    T2 = "fb"
    pg.traces[T2] = []
    for name, ins in pg.traces[T]:
        pg.traces[T2].append((name, ins))
        if name == "epilogue":
            break
    pg.visit(T2, "fallback", fallback(0))
    head(T2, 0)
    pg.visit(T2, "next", nexthead())
    head(T2, 1)
    pg.visit(T2, "fallback", fallback(1))
    head(T2, 1)
    end = mk("L_done:")
    if ts:
        end += mk(f"""s_memtime s[{sTS+8}:{sTS+9}]
s_memrealtime s[{sTS+10}:{sTS+11}]
s_waitcnt lgkmcnt(0)
s_add_u32 s{sK}, s64, {1<<27}
s_addc_u32 s{sK+1}, s65, 0
s_mov_b32 s{sK+2}, 0x100000
s_mov_b32 s{sK+3}, 0x20000
v_mov_b32 v32, s{sTS}
v_mov_b32 v33, s{sTS+2}
v_mov_b32 v34, s{sTS+4}
v_mov_b32 v35, s{sTS+6}
v_mov_b32 v36, s{sTS+8}
v_mov_b32 v37, s{sTS+10}
v_mov_b32 v38, s66
v_mov_b32 v39, s68
s_lshl_b32 s3, s2, 7
s_lshl_b32 s{sT0}, s{sWAVE}, 5
s_add_u32 s3, s3, s{sT0}
v_mov_b32 v40, s3
buffer_store_dwordx4 v[32:35], v40, {srd(sK)}, 0 offen
buffer_store_dwordx4 v[36:39], v40, {srd(sK)}, 0 offen offset:16""")
    if DIAG[0]:
        end += mk(f"""s_lshl_b32 s3, s{sWAVE}, 10
s_add_u32 s3, s3, {XBASE + 4096}
v_lshl_add_u32 v40, v0, 3, s3
ds_read_b64 v[32:33], v40
s_lshl_b32 s3, s2, 11
s_lshl_b32 s{sT0}, s{sWAVE}, 9
s_add_u32 s3, s3, s{sT0}
s_add_u32 s3, s3, 0x40000
v_lshl_add_u32 v40, v0, 3, s3
s_waitcnt lgkmcnt(0)
buffer_store_dwordx2 v[32:33], v40, {srd(sK)}, 0 offen""")
    end += mk("L_end:\ns_endpgm")
    pg.visit(T, "end", end)
    pg.resolve()
    errs = pg.check()
    return pg.text(), errs
```

```python
from asmlib import *

OWS_BRANCH = 120 * 128 * 1024
NSV = [4]
STAG = [0]
DIAG = [False]
sO, sW, sD = 4, 8, 12
sWAVE, sOOFF, sWOFF, sL, sCNT, sT0, sT1, sT2, sT3 = 16, 17, 18, 19, 20, 21, 22, 23, 24
srd = lambda b: f"s[{b}:{b+3}]"
AA = lambda n: 8 + n
WV = lambda i: 12 + i
BV = lambda qi: 16 + qi
ACC = lambda qi, n: 32 + (qi * 4 + n) * 4
AF = lambda par, n: 64 + (par * 4 + n) * 4
BF = lambda st, ks, qi: (((st % NSV[0]) * 4 + ks) * 2 + qi) * 4
AA2 = lambda n: 20 + n
sOX, sWX, sMASK, sSTG = 25, 26, 27, 28
MF = "v_mfma_f32_16x16x32_bf16"


def rr(k, b, n=4):
    return f"{k}[{b}:{b+n-1}]"


def loads(st, pol):
    NS = NSV[0]
    r = [I(f"s_add_u32 m0, s{sL}, {(st % NS) * 16384}")]
    w = [I(f"buffer_load_dwordx4 v{WV(i)}, {srd(sW)}, s{sWX} offen offset:{i*1024} {pol[1]} lds", tag=f"S{st}", wr=([("W", st % NS)], f"S{st}")) for i in range(4)]
    b = [I(f"buffer_load_dwordx4 {rr('a', BF(st, ks, qi))}, v{BV(qi)}, {srd(sO)}, s{sOX} offen offset:{ks*1024} {pol[0]}", tag=f"S{st}") for ks in range(4) for qi in range(2)]
    post = [I(f"s_add_u32 s{sWOFF}, s{sWOFF}, 131072"), I(f"s_add_u32 s{sOOFF}, s{sOOFF}, 4096")]
    return r, w + b, post


def rd_a(st, ks, n, sec):
    NS = NSV[0]
    sl = st % NS
    a = AA(n) if sl < 4 else AA2(n)
    return I(f"ds_read_b64_tr_b16 {rr('v', AF(ks & 1, n) + 2*sec, 2)}, v{a} offset:{(sl % 4)*16384 + ks*4096 + sec*2048}", rd=(("W", sl), f"S{st}"))


def stage(st, pol, loop_end=False):
    out = [WAIT(vm=[f"S{st}"]), I("s_barrier")]
    ld = None
    D = NSV[0] - 1
    if st + D < 32:
        pre, ld, post = loads(st + D, pol)
        out += pre
    out += [rd_a(st, 0, n, sec) for n in range(4) for sec in range(2)]
    if ld is not None:
        out += ld[:4]
        ld = ld[4:]
    mf = []
    for ks in range(4):
        for n in range(4):
            for qi in range(2):
                a = rr("v", ACC(qi, n))
                mf.append(f"{MF} {a}, {rr('v', AF(ks & 1, n))}, {rr('a', BF(st, ks, qi))}, {a}")
    G = Gaps(mf)
    out.append(WAIT(lgkm="auto"))
    for ks in range(4):
        if ks < 3:
            for n in range(4):
                for sec in range(2):
                    G.put(8 * ks + 2 * n + sec, rd_a(st, ks + 1, n, sec))
            G.put(8 * ks + 7, WAIT(lgkm="auto"))
        G.put(8 * ks + 3, WAIT(lgkm="auto"))
    if ld is not None:
        for i, l in enumerate(ld):
            G.put(24 + i, l)
    if DIAG[0]:
        out.insert(2, I("s_memtime s[86:87]"))
        G.put(30, "v_mov_b32 v30, s86"); G.put(31, "ds_write_b32 v24, v30"); G.put(31, "v_add_u32 v24, 4, v24")
    out += G.emit()
    if ld is not None:
        out += post
    if loop_end:
        out += mk(f"s_add_u32 s{sCNT}, s{sCNT}, 1\ns_cmp_lt_u32 s{sCNT}, {loop_end}\ns_cbranch_scc1 L2_loop")
    return out


def build(opts):
    pol = tuple(opts.get(k, "").replace("+", " ").replace("-", "") for k in ("k2o", "k2w", "k2st"))
    ts = opts.get("ts", False)
    NSV[0] = NS = int(opts.get("ns", 4))
    stag = int(opts.get("stag", 0))
    DIAG[0] = bool(opts.get("diag2"))
    soff = int(opts.get("soff", 0))
    pg = Prog()
    T = "k2"
    init = f"""
s_cmp_ge_u32 s2, 240
s_cbranch_scc1 L2_end
s_bfe_u32 s{sT0}, s2, 0x10002             ; branch
s_mul_i32 s3, s{sT0}, 40
s_add_u32 s30, s0, s3
s_addc_u32 s31, s1, 0
s_load_dwordx2 s[32:33], s[30:31], 32     ; wo
s_load_dwordx2 s[34:35], s[0:1], 80       ; out
s_load_dwordx2 s[36:37], s[0:1], 96       ; ws
{"s_memtime s[66:67]" if ts else ""}
{"s_memrealtime s[68:69]" if ts else ""}
s_and_b32 s3, s2, 3
s_mul_i32 s3, s3, 30
s_lshr_b32 s{sT1}, s2, 3
s_add_u32 s3, s3, s{sT1}
s_lshr_b32 s{sT1}, s3, 3                  ; m tile
s_and_b32 s{sT2}, s3, 7                   ; n tile
v_lshrrev_b32 v1, 6, v0
v_and_b32 v0, 63, v0
v_readfirstlane_b32 s{sWAVE}, v1
v_lshrrev_b32 v1, 3, v0
v_and_b32 v2, 7, v0
v_and_b32 v3, 6, v1
v_xor_b32 v2, v2, v3
v_lshlrev_b32 v2, 4, v2
v_lshl_add_u32 v{WV(0)}, v1, 10, v2
v_add_u32 v{WV(1)}, 7168, v{WV(0)}
v_add_u32 v{WV(2)}, {2*7168}, v{WV(0)}
v_add_u32 v{WV(3)}, {3*7168}, v{WV(0)}
v_lshlrev_b32 v{BV(0)}, 4, v0
v_add_u32 v{BV(1)}, 131072, v{BV(0)}
s_lshl_b32 s{sL}, s{sWAVE}, 12
s_lshl_b32 s{sWOFF}, s{sWAVE}, 15
s_lshl_b32 s3, s{sT2}, 7
s_add_u32 s{sWOFF}, s{sWOFF}, s3
s_lshl_b32 s{sOOFF}, s{sT1}, 20
s_lshl_b32 s3, s{sWAVE}, 18
s_add_u32 s{sOOFF}, s{sOOFF}, s3
s_lshl_b32 s3, s{sT1}, 1
s_add_u32 s3, s3, s{sT2}
s_and_b32 s{sMASK}, s3, {stag}
s_mul_i32 s{sSTG}, s{sT1}, {soff}
s_and_b32 s{sSTG}, s{sSTG}, {stag}
s_xor_b32 s3, s{sSTG}, s{sMASK}
s_mul_i32 s{sOX}, s3, {120*4096}
s_add_u32 s{sOX}, s{sOX}, s{sOOFF}
s_lshl_b32 s3, s3, 17
s_add_u32 s{sWX}, s3, s{sWOFF}
s_mul_i32 s3, s{sT0}, {OWS_BRANCH}
s_waitcnt lgkmcnt(0)
s_add_u32 s{sO}, s36, s3
s_addc_u32 s{sO+1}, s37, 0
s_mov_b32 s{sO+2}, {OWS_BRANCH}
s_mov_b32 s{sO+3}, 0x20000
s_mov_b32 s{sW}, s32
s_mov_b32 s{sW+1}, s33
s_mov_b32 s{sW+2}, 0x400000
s_mov_b32 s{sW+3}, 0x20000
"""
    seq = mk(init)
    for st in range(NS - 1):
        pre, ld, post = loads(st, pol)
        seq += pre + mk("s_nop 0") + ld + post
    rest = f"""
s_mov_b32 s{sD}, s34
s_mov_b32 s{sD+1}, s35
s_mov_b32 s{sD+2}, {1920*2048}
s_mov_b32 s{sD+3}, 0x20000
s_mov_b32 s{sCNT}, 0
v_lshrrev_b32 v1, 2, v0
v_and_b32 v2, 3, v0
v_bfe_u32 v3, v0, 3, 2
v_lshlrev_b32 v4, 7, v1
v_lshl_add_u32 v4, v3, 5, v4
v_lshl_add_u32 v{AA(0)}, v2, 3, v4
v_xor_b32 v{AA(1)}, 32, v{AA(0)}
v_xor_b32 v{AA(2)}, 64, v{AA(0)}
v_xor_b32 v{AA(3)}, 0x60, v{AA(0)}
v_add_u32 v{AA2(0)}, 0x10000, v{AA(0)}
v_add_u32 v{AA2(1)}, 0x10000, v{AA(1)}
v_add_u32 v{AA2(2)}, 0x10000, v{AA(2)}
v_add_u32 v{AA2(3)}, 0x10000, v{AA(3)}
v_and_b32 v1, 15, v0
v_lshrrev_b32 v2, 4, v0
v_lshrrev_b32 v3, 1, v2
v_and_b32 v4, 1, v2
v_lshl_or_b32 v3, v4, 1, v3
v_lshlrev_b32 v3, 4, v3
v_lshl_add_u32 v18, v1, 11, v3
s_lshl_b32 s3, s{sT1}, 18
s_lshl_b32 s{sT3}, s{sWAVE}, 16
s_add_u32 s3, s3, s{sT3}
s_lshl_b32 s{sT3}, s{sT0}, 10
s_add_u32 s3, s3, s{sT3}
s_lshl_b32 s{sT3}, s{sT2}, 7
s_add_u32 s{sT3}, s3, s{sT3}
s_add_u32 s{sT2}, s{sT3}, 32768
"""
    seq += mk(rest) + mk([f"v_mov_b32 v{i}, 0" for i in range(32, 64)])
    if DIAG[0]:
        seq += mk(f"s_lshl_b32 s3, s{sWAVE}, 8\ns_add_u32 s3, s3, {NS*16384}\nv_mov_b32 v24, s3")
    pg.visit(T, "init2", seq)
    pg.visit(T, "lbl2", mk(".p2align 3\nL2_loop:"))
    trips = (32 - (NS - 1)) // NS
    for st in range(trips * NS):
        pg.visit(T, f"st_{st % NS}", stage(st, pol, loop_end=(trips if st % NS == NS - 1 else False)))
    for st in range(trips * NS, 32):
        pg.visit(T, f"st_t{st}", stage(st, pol))
    o = ["s_nop 7"]
    for qi in range(2):
        for p in range(2):
            b0, b1 = ACC(qi, 2 * p), ACC(qi, 2 * p + 1)
            t = 64 + (qi * 2 + p) * 4
            o += [f"v_cvt_pk_bf16_f32 v{t}, v{b0}, v{b0+1}", f"v_cvt_pk_bf16_f32 v{t+2}, v{b1}, v{b1+1}",
                  f"v_cvt_pk_bf16_f32 v{t+1}, v{b0+2}, v{b0+3}", f"v_cvt_pk_bf16_f32 v{t+3}, v{b1+2}, v{b1+3}",
                  f"v_permlane16_swap_b32 v{t}, v{t+2}", "s_nop 0", f"v_permlane16_swap_b32 v{t+1}, v{t+3}",
                  f"buffer_store_dwordx4 {rr('v', t)}, v18, {srd(sD)}, s{sT2 if qi else sT3} offen offset:{p*64} {pol[2]}"]
    if ts:
        o += f"""s_memtime s[70:71]
s_memrealtime s[72:73]
s_waitcnt lgkmcnt(0)
s_add_u32 s{sW}, s36, {(1<<27) + (1<<20)}
s_addc_u32 s{sW+1}, s37, 0
s_mov_b32 s{sW+2}, 0x100000
s_mov_b32 s{sW+3}, 0x20000
v_mov_b32 v32, s66
v_mov_b32 v33, s68
v_mov_b32 v34, s70
v_mov_b32 v35, s72
s_lshl_b32 s3, s2, 6
s_lshl_b32 s{sT0}, s{sWAVE}, 4
s_add_u32 s3, s3, s{sT0}
v_mov_b32 v40, s3
buffer_store_dwordx4 v[32:35], v40, {srd(sW)}, 0 offen""".split("\n")
    if DIAG[0]:
        o += f"""s_lshl_b32 s3, s{sWAVE}, 8
s_add_u32 s3, s3, {NS*16384}
v_lshl_add_u32 v40, v0, 2, s3
ds_read_b32 v32, v40
s_lshl_b32 s3, s2, 10
s_lshl_b32 s{sT0}, s{sWAVE}, 8
s_add_u32 s3, s3, s{sT0}
s_add_u32 s3, s3, 0x40000
v_lshl_add_u32 v40, v0, 2, s3
s_waitcnt lgkmcnt(0)
buffer_store_dword v32, v40, {srd(sW)}, 0 offen""".split("\n")
    o += ["L2_end:", "s_endpgm"]
    pg.visit(T, "end2", mk(o))
    pg.resolve()
    errs = pg.check()
    return pg.text(), errs, (("oproj_kernel", 240, 256, NS * 16384 + 1024), lambda t: ("oproj_kernel", t, 96 + NS * 32, 96))
```

```python
import struct
from asmlib import *

R = 8
KBASE, VBASE, XBASE = 0, 65536, 131072
SB = [65536, 32768, 98304, 131072]
SB_ALIAS = [[("V", i) for i in range(4)], [("K", i) for i in range(4, 8)], [("V", i) for i in range(4, 8)], []]
FLAG = XBASE
OWS_BRANCH = 120 * 128 * 1024
QSCALE = 1.4426950408889634 / (128 ** 0.5)
LTHRESH = float(2 ** 30)


def f2u(f):
    return struct.unpack("<I", struct.pack("<f", f))[0]


sK, sV, sX, sW, sO = 4, 8, 12, 16, 20
sWAVE, sKOFF, sVOFF, sXOFF, sWOFF = 24, 25, 26, 27, 28
sKVL = 29
sCUR, sN1, sN2, sN3, sDMA, sDELTA = 30, 31, 32, 33, 34, 35
sCNT, sHEAD, sRETRY, sOOFF, sT0, sT1, sT2, sT3 = 36, 37, 38, 39, 40, 41, 42, 43
sBAD = 44
sC = 46
sTH = 48
sTS = 70
srd = lambda b: f"s[{b}:{b+3}]"

AA = lambda u: 8 + u
XA = 16
XV = lambda qt: 17 + qt
WV = lambda i: 21 + i
KV0, KV1, VV0, VV1 = 25, 26, 27, 28
KA = lambda j: 8 + j
VA = lambda t: 12 + t
LV = {0: 20, 2: 22}
OVOFF = 29
S = lambda qt, e: 32 + qt * 8 + e
P = lambda qt: 64 + qt * 4
NM = lambda qt: 80 + qt * 4
LS = {1: 96, 3: 100}
ONES = 104
MG = lambda qt: 108 + qt
TMP = 112
O = lambda qt, t: 128 + (qt * 8 + t) * 4
KF = lambda par, kt, j: par * 32 + (kt * 4 + j) * 4
VF = lambda par, t: 64 + par * 32 + t * 4
Q = lambda hh, qt, j: 128 + hh * 64 + (qt * 4 + j) * 4
AF = lambda T: 128 + T * 4
XF = lambda par, qt: 192 + par * 16 + qt * 4


def ACC(T, qt):
    i = T * 4 + qt
    return ("v", 32 + 4 * i) if i < 56 else ("a", 224 + 4 * (i - 56))


def rr(k, b, n=4):
    return f"{k}[{b}:{b+n-1}]"


MF = "v_mfma_f32_16x16x32_bf16"
POL = {"x": "", "wq": "", "ost": "", "kv": "nt"}


def dma_k(tile):
    slot = tile % R
    al = [("SB", 1)] if slot >= 4 else []
    wr = ([("K", slot)] + al, f"K{tile}")
    return [I(f"s_add_u32 m0, s{sKVL}, {KBASE + slot*8192}"),
            I(f"buffer_load_dwordx4 v{KV0}, {srd(sK)}, s{sKOFF} offen {POL['kv']} lds", tag=f"K{tile}", wr=wr),
            I(f"buffer_load_dwordx4 v{KV1}, {srd(sK)}, s{sKOFF} offen offset:1024 {POL['kv']} lds", tag=f"K{tile}", wr=wr),
            I(f"s_add_u32 s{sKOFF}, s{sKOFF}, 8192")]


def dma_v(tile):
    slot = tile % R
    al = [("SB", 2)] if slot >= 4 else [("SB", 0)]
    wr = ([("V", slot)] + al, f"V{tile}")
    return [I(f"s_add_u32 m0, s{sKVL}, {VBASE + slot*8192}"),
            I(f"buffer_load_dwordx4 v{VV0}, {srd(sV)}, s{sVOFF} offen {POL['kv']} lds", tag=f"V{tile}", wr=wr),
            I(f"buffer_load_dwordx4 v{VV1}, {srd(sV)}, s{sVOFF} offen offset:1024 {POL['kv']} lds", tag=f"V{tile}", wr=wr),
            I(f"s_add_u32 s{sVOFF}, s{sVOFF}, 8192")]


def rd_k(tile, kt, j):
    slot = tile % R
    return I(f"ds_read_b128 {rr('a', KF(tile & 1, kt, j))}, v{KA(j)} offset:{slot*8192 + kt*4096}", rd=(("K", slot), f"K{tile}"))


def rd_v(tile, t, sec):
    slot = tile % R
    return I(f"ds_read_b64_tr_b16 {rr('a', VF(tile & 1, t) + 2*sec, 2)}, v{VA(t)} offset:{slot*8192 + sec*4096}", rd=(("V", slot), f"V{tile}"))


def st_dma_w(stage, i):
    return I(f"buffer_load_dwordx4 v{WV(i)}, {srd(sW)}, s{sWOFF} offen offset:{i*1024} {POL['wq']} lds", tag=f"S{stage}", wr=([("SB", stage % 4)], f"S{stage}"))


def st_dma_x(stage, qt):
    return I(f"buffer_load_dwordx4 v{XV(qt)}, {srd(sX)}, s{sXOFF} offen offset:{qt*1024} {POL['x']} lds", tag=f"S{stage}", wr=([("SB", stage % 4)], f"S{stage}"))


def rd_a(stage, T, sec):
    return I(f"ds_read_b64_tr_b16 {rr('a', AF(T) + 2*sec, 2)}, v{AA(T & 7)} offset:{sec*2048 + (T >> 3)*256}", rd=(("SB", stage % 4), f"S{stage}"))


def rd_x(stage, qt):
    return I(f"ds_read_b128 {rr('a', XF(stage & 1, qt))}, v{XA} offset:{qt*1024}", rd=(("SB", stage % 4), f"S{stage}"))


DIAG1 = [False]


def p1_step(kk, kvq=None, loop_end=False):
    mf = []
    for T in range(16):
        for qt in range(4):
            k, b = ACC(T, qt)
            mf.append(f"{MF} {rr(k, b)}, {rr('a', AF(T))}, {rr('a', XF(kk & 1, qt))}, {rr(k, b)}")
    G = Gaps(mf)
    g = 0
    for T in range(8, 16):
        base = (T - 8) // 2 * 6 + (T & 1) * 2
        G.put(base, rd_a(kk, T, 0)); G.put(base + 1, rd_a(kk, T, 1))
    free1 = [4, 10, 16]
    freekv = [4, 16]
    if kk + 3 < 16:
        for n, qt in enumerate((1, 2, 3)):
            G.put(free1[n], st_dma_x(kk + 3, qt))
        G.put(17, f"s_add_u32 s{sXOFF}, s{sXOFF}, 64")
        freekv = []
    free1 = freekv
    last = kk == 15
    if not last:
        G.put(22, f"s_sub_u32 s{sDELTA}, s{sN1}, s{sCUR}")
        for u in range(8):
            G.put(23 + u // 2 * 1 + 0, f"v_add_u32 v{AA(u)}, s{sDELTA}, v{AA(u)}")
        G.put(27, f"v_add_u32 v{XA}, s{sDELTA}, v{XA}")
        G.put(23, f"s_mov_b32 s{sDMA}, s{sCUR}")
        G.put(24, f"s_mov_b32 s{sCUR}, s{sN1}")
        G.put(25, f"s_mov_b32 s{sN1}, s{sN2}")
        G.put(27, f"s_mov_b32 s{sN2}, s{sN3}")
        G.put(28, f"s_mov_b32 s{sN3}, s{sDMA}")
    G.put(30, WAIT(lgkm=0, vm=[f"S{kk+1}"] if not last else None))
    G.put(31, "s_barrier")
    if not last:
        for m in range(4):
            base = 32 + 8 * m
            G.put(base, rd_x(kk + 1, m))
            for h in range(2):
                T = 2 * m + h
                G.put(base + 1 + 2 * h, rd_a(kk + 1, T, 0)); G.put(base + 2 + 2 * h, rd_a(kk + 1, T, 1))
    free2 = [37, 53]
    if kk + 4 < 16:
        G.put(36, f"s_add_u32 m0, s{sDMA}, 16384")
        for n, gg in enumerate((37, 45, 47, 53)):
            G.put(gg, st_dma_w(kk + 4, n))
        G.put(54, f"s_add_u32 s{sWOFF}, s{sWOFF}, 262144")
        G.put(55, f"s_mov_b32 m0, s{sDMA}")
        G.put(61, st_dma_x(kk + 4, 0))
        free2 = []
    if kvq is not None:
        for free, minbar in ((free1, kk - 1), (free2, kk)):
            while len(free) >= 2 and kvq and kvq[0][0] <= minbar:
                _, grp = kvq.pop(0)
                g0, g1 = free.pop(0), free.pop(0)
                G.put(g0 - 1, grp[0]); G.put(g0, grp[1]); G.put(g1, grp[2]); G.put(g1 + 1, grp[3])
    if not last:
        G.put(62, WAIT(lgkm="auto"))
        G.put(11, WAIT(lgkm="auto"))
    else:
        G.put(11, WAIT(lgkm="auto"))
    if DIAG1[0]:
        G.put(0, "s_memtime s[86:87]")
        G.put(29, "v_mov_b32 v7, s86"); G.put(38, "buffer_store_dword v7, v6, s[92:95], 0 offen"); G.put(39, "v_add_u32 v6, 4, v6")
    if loop_end:
        G.put(58, f"s_add_u32 s{sCNT}, s{sCNT}, 1")
        G.put(63, f"s_cmp_lt_u32 s{sCNT}, 6")
    out = G.emit()
    if loop_end:
        out += mk("s_cbranch_scc1 L_p1loop")
    return out


MSUM = (1, 3)
DIAG = [False]


def qk_chain(tile, qt, kt, czero=False):
    d = S(qt, 4 * kt)
    r = []
    for j in range(4):
        c = ("0" if czero else rr("v", NM(qt))) if j == 0 else rr("v", d)
        r.append(f"{MF} {rr('v', d)}, {rr('a', KF(tile & 1, kt, j))}, {rr('a', Q(0, qt, j))}, {c}")
    return r


def sm_exp(qt, e): return f"v_exp_f32 v{S(qt,e)}, v{S(qt,e)}"
def sm_add(qt, e): return f"v_add_f32 v{LV[qt]}, v{LV[qt]}, v{S(qt,e)}"
def sm_cvt(qt, i): return f"v_cvt_pk_bf16_f32 v{P(qt)+i}, v{S(qt,2*i)}, v{S(qt,2*i+1)}"


def epoch(s, first=False, last=False, ctl=None):
    out = []
    reads = [rd_k(s + 2, 0, j) for j in range(4)] + [rd_v(s + 1, t, sec) for t in range(8) for sec in range(2)] + [rd_k(s + 2, 1, j) for j in range(4)]
    for b in range(4):
        pv = []
        for t in range(8):
            o = rr("v", O(b, t))
            pv.append(f"{MF} {o}, {rr('a', VF(s & 1, t))}, {rr('v', P(b))}, {'0' if first else o}")
        if b in MSUM:
            l = rr("v", LS[b])
            pv.append(f"{MF} {l}, {rr('v', ONES)}, {rr('v', P(b))}, {'0' if first else l}")
        sq = (b + 1) & 3
        if not last:
            G = Gaps(qk_chain(s + 1, b, 0) + pv + qk_chain(s + 1, b, 1))
            for e in range(8):
                G.put(2 * e, sm_exp(sq, e))
            if b in (0, 2):
                dsg = [1, 3, 5, 7, 11, 15]
                for i in range(4):
                    G.put(4 * i + 3, sm_cvt(sq, i))
                if b == 0:
                    G.put(1, sm_add(0, 6)); G.put(5, sm_add(0, 7))
                d = dma_k(s + R) if b == 0 else dma_v(s + R - 1)
                G.put(8, d[0]); G.put(9, d[1]); G.put(13, d[2]); G.put(14, d[3])
            else:
                dsg = [1, 5, 7, 9, 13, 15]
                for gg, e in ((1, 0), (3, 1), (5, 2), (9, 3), (11, 4), (13, 5)):
                    G.put(gg, sm_add(sq, e))
                for i in range(4):
                    G.put(4 * i + 3, sm_cvt(sq, i))
                if b == 1:
                    G.put(16, sm_add(sq, 6)); G.put(16, sm_add(sq, 7))
            for gg in dsg:
                G.put(gg, reads.pop(0))
            if b == 0:
                G.put(3, WAIT(lgkm="auto")); G.put(11, WAIT(lgkm="auto"))
            if b == 3:
                G.put(15, WAIT(lgkm="auto", vm=[f"K{s+3}", f"V{s+2}"]))
                if ctl == "exit":
                    G.put(12, f"s_add_u32 s{sCNT}, s{sCNT}, 1"); G.put(14, f"s_cmp_eq_u32 s{sCNT}, 4")
                G.put(16, "s_barrier")
            if DIAG[0]:
                if b == 0:
                    G.put(0, "s_memtime s[86:87]"); G.put(1, "s_memrealtime s[88:89]")
                if b == 3:
                    G.put(2, "v_mov_b32 v30, s86"); G.put(2, "v_mov_b32 v31, s88")
                    G.put(3, "ds_write_b64 v24, v[30:31]"); G.put(4, "v_add_u32 v24, 8, v24")
            else:
                assert G.excess() == 0, (b, G.excess())
            out += G.emit()
        else:
            G = Gaps(pv)
            pre = []
            if b == 0:
                pre += [WAIT(lgkm="auto")]
                G.put(0, sm_add(0, 6)); G.put(1, sm_add(0, 7))
            else:
                pre += ["s_nop 1"]
            n = len(pv)
            if b < 3:
                va = []
                for e in range(8):
                    G.put(e, sm_exp(sq, e))
                    if e >= 1 and sq not in MSUM:
                        G.put(e, sm_add(sq, e - 1))
                    if e >= 2 and e % 2 == 0:
                        G.put(e, sm_cvt(sq, e // 2 - 1))
                tail = ["s_nop 0"] if n == 8 else []
                tl = ([sm_add(sq, 7)] if sq not in MSUM else []) + [sm_cvt(sq, 3)]
                if n == 9:
                    G.put(8, tl); tl = []
            else:
                tail, tl = [], []
            for gg in range(6):
                G.put(gg + 1, reads.pop(0))
            if b in (0, 2):
                d = dma_k(s + R) if b == 0 else dma_v(s + R - 1)
                pre.insert(0, d[0]); G.put(0, d[1]); G.put(7, d[2]); tl = tl + [d[3]]
            out += mk(pre) + G.emit() + mk(tail) + mk(tl)
            if b == 3:
                out += [WAIT(lgkm=0, vm=[f"K{s+3}", f"V{s+2}"]), I("s_barrier")]
    if ctl == "exit":
        out += mk("s_cbranch_scc1 L_last")
    if ctl == "back":
        out += mk("s_branch L_loop")
    return out


def xreduce(reg, tmp, op):
    return [f"v_mov_b32 v{tmp}, v{reg}", "s_nop 1", f"v_permlane16_swap_b32 v{reg}, v{tmp}", f"{op} v{reg}, v{reg}, v{tmp}",
            f"v_mov_b32 v{tmp}, v{reg}", "s_nop 1", f"v_permlane32_swap_b32 v{reg}, v{tmp}", f"{op} v{reg}, v{reg}, v{tmp}"]


def head_prologue(s0):
    mf = []
    for qt in range(4):
        mf += qk_chain(s0, qt, 0, True) + qk_chain(s0, qt, 1, True)
    G = Gaps(mf)

    def maxops(qt):
        m, t = TMP + 2 * qt, TMP + 2 * qt + 1
        r = [f"v_max3_f32 v{m}, v{S(qt,0)}, v{S(qt,1)}, v{MG(qt)}", f"v_max3_f32 v{t}, v{S(qt,2)}, v{S(qt,3)}, v{S(qt,4)}",
             f"v_max3_f32 v{m}, v{m}, v{S(qt,5)}, v{S(qt,6)}", f"v_max3_f32 v{m}, v{m}, v{t}, v{S(qt,7)}"]
        r += xreduce(m, t, "v_max_f32")
        r += [f"v_sub_f32 v{S(qt,e)}, v{S(qt,e)}, v{m}" for e in range(8)]
        r += [f"v_sub_f32 v{NM(qt)+i}, 0, v{m}" for i in range(4)]
        return r
    G.put(0, f"s_mov_b32 s{sCNT}, 0")
    G.put(0, f"v_mov_b32 v{LV[0]}, 0"); G.put(0, f"v_mov_b32 v{LV[2]}, 0")
    out = mk([WAIT(lgkm="auto")])
    sm0 = []
    for e in range(8):
        sm0.append(sm_exp(0, e))
        if 1 <= e <= 6:
            sm0.append(sm_add(0, e - 1))
        if e >= 2 and e % 2 == 0:
            sm0.append(sm_cvt(0, e // 2 - 1))
    sm0 += ["s_nop 0", sm_cvt(0, 3)]
    stream = [(15, x) for x in maxops(0)] + [(19, x) for x in maxops(1)] + [(19, x) for x in sm0] + [(27, x) for x in maxops(2)] + [(99, x) for x in maxops(3)]
    seq = []
    si = 0
    for g in range(32):
        seq.append(G.mf[g]); seq += G.sc[g] + G.va[g]
        budget = 3
        while si < len(stream) and stream[si][0] <= g and budget > 0:
            seq += mk(stream[si][1]); si += 1; budget -= 1
    rest = [x for _, x in stream[si:]]
    n_before3 = len([1 for gg, _ in stream[si:] if gg != 99])
    if n_before3 < 8:
        seq += mk(f"s_nop {7 - n_before3}")
    seq += mk(rest)
    seq += mk("s_nop 1")
    return out + seq


def head_epilogue():
    o = []
    o += ["s_nop 7"]
    o += xreduce(LV[0], TMP, "v_add_f32") + xreduce(LV[2], TMP + 1, "v_add_f32")
    lreg = {0: LV[0], 1: LS[1], 2: LV[2], 3: LS[3]}
    o += [f"v_maximum3_f32 v{TMP}, v{lreg[0]}, v{lreg[1]}, v{lreg[2]}",
          f"v_maximum3_f32 v{TMP}, v{TMP}, v{lreg[3]}, v{lreg[3]}",
          f"v_cmp_nge_f32 vcc, s{sTH}, v{TMP}"]
    for qt in range(4):
        o.append(f"v_rcp_f32 v{lreg[qt]}, v{lreg[qt]}")
    o += [f"s_or_b32 s{sT0}, vcc_lo, vcc_hi", f"s_lshl_b32 s{sT1}, s{sWAVE}, 2", f"s_add_u32 s{sT1}, s{sT1}, {FLAG}",
          f"v_mov_b32 v{TMP}, s{sT0}", f"v_mov_b32 v{TMP+1}, s{sT1}", f"ds_write_b32 v{TMP+1}, v{TMP}",
          f"s_mov_b32 s{sT2}, s{sOOFF}"]
    n = 0
    for qt in range(4):
        if qt == 3:
            o += [f"s_cmp_eq_u32 s{sWAVE}, 3", "s_cbranch_scc1 L_skipst"]
        for u in range(4):
            b = O(qt, 2 * u)
            t = TMP + 4 + 4 * (n % 3); n += 1
            for i in range(4):
                o.append(f"v_pk_mul_f32 v[{b+2*i}:{b+2*i+1}], v[{b+2*i}:{b+2*i+1}], v[{lreg[qt]}:{lreg[qt]+1}] op_sel_hi:[1,0]")
            for i in range(4):
                o.append(f"v_cvt_pk_bf16_f32 v{t+i}, v{b+2*i}, v{b+2*i+1}")
            o.append(I(f"buffer_store_dwordx4 {rr('v', t)}, v{OVOFF}, {srd(sO)}, s{sT2} offen offset:{u*1024} {POL['ost']}", tag="ST"))
        o.append(f"s_add_u32 s{sT2}, s{sT2}, {128*1024}")
    o += ["L_skipst:", "s_waitcnt lgkmcnt(0)", "s_barrier",
          f"v_mov_b32 v{TMP+1}, {FLAG}", f"ds_read_b128 {rr('v', S(0,0))}, v{TMP+1}", "s_waitcnt lgkmcnt(0)",
          f"v_or3_b32 v{TMP}, v{S(0,0)}, v{S(0,1)}, v{S(0,2)}", f"v_or_b32 v{TMP}, v{TMP}, v{S(0,3)}", "s_nop 0",
          f"v_readfirstlane_b32 s{sT0}, v{TMP}", "s_nop 3",
          f"s_andn2_b32 s{sT0}, s{sT0}, s{sRETRY}",
          "s_cbranch_scc1 L_fallback"]
    return mk(o)


def mg_init():
    return [f"v_mov_b32 v{MG(0)}, 0xff800000", f"v_mov_b32 v{MG(1)}, 0xff800000", f"v_mov_b32 v{MG(2)}, 0xff800000",
            f"s_cmp_eq_u32 s{sWAVE}, 3", f"s_cselect_b32 s{sT0}, 0x43480000, 0", f"s_cselect_b32 s{sT1}, 0, 0xff800000",
            f"s_or_b32 s{sT0}, s{sT0}, s{sT1}", f"v_mov_b32 v{MG(3)}, s{sT0}"]


def prime_reads(s0):
    r = [rd_k(s0, kt, j) for kt in range(2) for j in range(4)]
    r += [rd_k(s0 + 1, 0, j) for j in range(4)] + [rd_v(s0, t, sec) for t in range(8) for sec in range(2)] + [rd_k(s0 + 1, 1, j) for j in range(4)]
    return r


def conversion():
    o = ["s_nop 7"]
    order = [(hh, j, qt) for hh in range(2) for j in range(4) for qt in range(4)]
    moved = {}

    def src(T, qt):
        k, b = ACC(T, qt)
        return b if k == "v" else moved[(T, qt)]
    for n, (hh, j, qt) in enumerate(order):
        if n == 16:
            i = 0
            for T in (14, 15):
                for q2 in range(4):
                    k, b = ACC(T, q2)
                    moved[(T, q2)] = 32 + 4 * i
                    o += [f"v_accvgpr_read_b32 v{32+4*i+x}, a{b+x}" for x in range(4)]
                    i += 1
        b0, b1 = src(hh * 8 + 2 * j, qt), src(hh * 8 + 2 * j + 1, qt)
        for b in (b0, b1):
            o += [f"v_pk_mul_f32 v[{b}:{b+1}], v[{b}:{b+1}], s[{sC}:{sC+1}]", f"v_pk_mul_f32 v[{b+2}:{b+3}], v[{b+2}:{b+3}], s[{sC}:{sC+1}]"]
        o += [f"v_cvt_pk_bf16_f32 v{b0}, v{b0}, v{b0+1}", f"v_cvt_pk_bf16_f32 v{b1}, v{b1}, v{b1+1}",
              f"v_cvt_pk_bf16_f32 v{b0+1}, v{b0+2}, v{b0+3}", f"v_cvt_pk_bf16_f32 v{b1+1}, v{b1+2}, v{b1+3}",
              f"v_permlane16_swap_b32 v{b0}, v{b1}", "s_nop 0", f"v_permlane16_swap_b32 v{b0+1}, v{b1+1}"]
        q = Q(hh, qt, j)
        o += [f"v_accvgpr_write_b32 a{q}, v{b0}", f"v_accvgpr_write_b32 a{q+2}, v{b1}",
              f"v_accvgpr_write_b32 a{q+1}, v{b0+1}", f"v_accvgpr_write_b32 a{q+3}, v{b1+1}"]
    return mk(o)


def p2_addr():
    o = f"""
v_and_b32 v1, 15, v0
v_lshrrev_b32 v2, 4, v0
v_lshrrev_b32 v3, 1, v2
v_and_b32 v4, 1, v2
v_lshl_or_b32 v3, v4, 1, v3
v_xor_b32 v3, v3, v1
v_lshlrev_b32 v3, 4, v3
v_lshl_add_u32 v{KA(0)}, v1, 8, v3
v_xor_b32 v{KA(1)}, 64, v{KA(0)}
v_xor_b32 v{KA(2)}, 0x80, v{KA(0)}
v_xor_b32 v{KA(3)}, 0xc0, v{KA(0)}
v_lshrrev_b32 v3, 2, v0
v_and_b32 v4, 3, v0
v_and_b32 v5, 7, v3
v_lshlrev_b32 v6, 8, v3
v_lshl_add_u32 v6, v5, 5, v6
v_lshl_add_u32 v6, v4, 3, v6
v_add_u32 v{VA(0)}, {VBASE}, v6
"""
    for t in range(1, 8):
        o += f"v_xor_b32 v{VA(t)}, {t<<5}, v{VA(0)}\n"
    return mk(o)


def p2_consts():
    o = f"""
v_and_b32 v4, 3, v0
v_cmp_eq_u32 vcc, 0, v4
v_mov_b32 v5, 0x3f803f80
s_nop 0
v_cndmask_b32 v{ONES}, 0, v5, vcc
v_cndmask_b32 v{ONES+1}, 0, v5, vcc
v_cndmask_b32 v{ONES+2}, 0, v5, vcc
v_cndmask_b32 v{ONES+3}, 0, v5, vcc
"""
    return mk(o) + mk(mg_init())


def fill(seq, dst, a, b, every=2):
    out = []
    n = 0
    for i in seq:
        out.append(i)
        if i.kind == "valu":
            n += 1
            if n % every == 0:
                out.append(I(f"{MF} {dst}, {rr('a', a + 4 * (n // every % 8))}, {rr('a', b + 4 * (n // every % 7))}, {dst}"))
    return out


def unpk(seq):
    out = []
    for i in seq:
        m = re.match(r"v_pk_mul_f32 v\[(\d+):(\d+)\], v\[\d+:\d+\], ([sv])\[(\d+):", i.text)
        if m:
            out += mk([f"v_mul_f32 v{m.group(1)}, {m.group(3)}{m.group(4)}, v{m.group(1)}", f"v_mul_f32 v{m.group(2)}, {m.group(3)}{m.group(4)}, v{m.group(2)}"])
        else:
            out.append(i)
    return out


def build(opts):
    for k in POL:
        if k in opts: POL[k] = opts[k].replace("+", " ").replace("-", "")
    mapping = opts.get("mapping", "A")
    ts = opts.get("ts", False)
    DIAG[0] = bool(opts.get("diag"))
    DIAG1[0] = bool(opts.get("diag1"))
    pg = Prog()
    T = "main"

    def stamp(i):
        return mk(f"s_memtime s[{sTS+2*i}:{sTS+2*i+1}]") if ts else []
    if mapping == "A":
        mp = f"""s_and_b32 s{sT1}, s2, 3
s_lshl_b32 s{sT1}, s{sT1}, 2
s_bfe_u32 s{sT2}, s2, 0x20003
s_add_u32 s{sT1}, s{sT1}, s{sT2}
s_lshr_b32 s{sT2}, s2, 5                  ; batch
"""
    else:
        mp = f"""s_bfe_u32 s{sT1}, s2, 0x40003
s_and_b32 s{sT2}, s2, 3
s_lshl_b32 s{sT2}, s{sT2}, 1
s_lshr_b32 s{sT3}, s2, 7
s_add_u32 s{sT2}, s{sT2}, s{sT3}          ; batch
"""
    tsinit = "s_memtime s[66:67]\ns_memrealtime s[68:69]" if ts else ""
    init = f"""
s_cmp_ge_u32 s2, 256
s_cbranch_scc1 L_end
s_bfe_u32 s{sT0}, s2, 0x10002             ; branch
s_mul_i32 s3, s{sT0}, 40
s_add_u32 s{sBAD}, s0, s3
s_addc_u32 s{sBAD+1}, s1, 0
s_load_dwordx8 s[56:63], s[{sBAD}:{sBAD+1}], 0     ; x, K, V, wq
s_load_dwordx2 s[64:65], s[0:1], 96                ; ws
{tsinit}
{mp}
v_lshrrev_b32 v1, 6, v0
v_and_b32 v0, 63, v0
v_readfirstlane_b32 s{sWAVE}, v1
v_lshrrev_b32 v1, 2, v0
v_and_b32 v2, 3, v0
v_lshrrev_b32 v3, 4, v0
v_lshlrev_b32 v4, 1, v3
v_and_b32 v4, 2, v4
v_lshrrev_b32 v5, 1, v3
v_mul_u32_u24 v5, 3, v5
v_xor_b32 v4, v4, v5
v_xor_b32 v4, v4, v2
v_lshlrev_b32 v4, 4, v4
v_lshl_add_u32 v4, v1, 10, v4
s_lshl_b32 s3, s{sWAVE}, 16
v_add_u32 v{XV(0)}, s3, v4
v_add_u32 v{XV(1)}, {15360}, v{XV(0)}
v_add_u32 v{XV(2)}, {2*15360}, v{XV(0)}
v_add_u32 v{XV(3)}, {3*15360}, v{XV(0)}
v_lshrrev_b32 v4, 5, v0
v_and_b32 v5, 31, v0
s_and_b32 s3, s{sWAVE}, 1
s_lshl_b32 s3, s3, 3
v_lshl_or_b32 v6, v4, 1, s3
v_xor_b32 v5, v5, v6
v_lshlrev_b32 v5, 4, v5
v_lshl_add_u32 v5, v4, 13, v5
s_lshl_b32 s3, s{sWAVE}, 16
v_add_u32 v{WV(0)}, s3, v5
v_xor_b32 v6, 64, v{WV(0)}
v_add_u32 v{WV(1)}, {15360}, v6
v_add_u32 v{WV(2)}, {2*15360}, v{WV(0)}
v_add_u32 v{WV(3)}, {3*15360}, v6
s_lshl_b32 s{sKVL}, s{sWAVE}, 11
s_lshl_b32 s3, s{sWAVE}, 12
s_add_u32 s{sCUR}, s3, {SB[0]}
s_add_u32 s{sN1}, s3, {SB[1]}
s_add_u32 s{sN2}, s3, {SB[2]}
s_add_u32 s{sN3}, s3, {SB[3]}
s_mov_b32 s{sXOFF}, 0
s_lshl_b32 s{sWOFF}, s{sT1}, 9
s_mul_i32 s3, s{sT2}, 245760
s_waitcnt lgkmcnt(0)
s_add_u32 s{sX}, s56, s3
s_addc_u32 s{sX+1}, s57, 0
s_mov_b32 s{sX+2}, 245760
s_mov_b32 s{sX+3}, 0x20000
s_mov_b32 s{sW}, s62
s_mov_b32 s{sW+1}, s63
s_mov_b32 s{sW+2}, 0x400000
s_mov_b32 s{sW+3}, 0x20000
"""
    seq = mk(init) + stamp(0)
    bases = [sCUR, sN1, sN2, sN3]
    for st in range(4):
        seq += mk(f"s_add_u32 m0, s{bases[st]}, 16384\ns_nop 0")
        seq += [st_dma_w(st, i) for i in range(4)]
        seq += mk(f"s_mov_b32 m0, s{bases[st]}\ns_add_u32 s{sWOFF}, s{sWOFF}, 262144")
        seq += [st_dma_x(st, qt) for qt in range(4 if st < 3 else 1)]
        if st < 3:
            seq += mk(f"s_add_u32 s{sXOFF}, s{sXOFF}, 64")
    rest = f"""
s_lshl_b32 s3, s{sT2}, 4
s_add_u32 s3, s3, s{sT1}
s_lshl_b32 s3, s3, 19
{"s_and_b32 s3, s3, 0x180000" if opts.get("kvl2") else ""}
s_add_u32 s{sK}, s58, s3
s_addc_u32 s{sK+1}, s59, 0
s_mov_b32 s{sK+2}, 0x80000
s_mov_b32 s{sK+3}, 0x20000
s_add_u32 s{sV}, s60, s3
s_addc_u32 s{sV+1}, s61, 0
s_mov_b32 s{sV+2}, 0x80000
s_mov_b32 s{sV+3}, 0x20000
s_mul_i32 s3, s{sT0}, {OWS_BRANCH}
s_add_u32 s{sO}, s64, s3
s_addc_u32 s{sO+1}, s65, 0
s_mov_b32 s{sO+2}, {OWS_BRANCH if not opts.get("nost0") else 0}
s_mov_b32 s{sO+3}, 0x20000
s_mul_i32 s3, s{sT2}, 15
s_lshl_b32 s{sT3}, s{sWAVE}, 2
s_add_u32 s3, s3, s{sT3}
s_lshl_b32 s3, s3, 17
s_lshl_b32 s{sT3}, s{sT1}, 13
s_add_u32 s{sOOFF}, s3, s{sT3}
s_mov_b32 s{sKOFF}, s{sKVL}
s_mov_b32 s{sVOFF}, s{sKVL}
s_mov_b32 s{sC}, {f2u(QSCALE):#x}
s_mov_b32 s{sC+1}, {f2u(QSCALE):#x}
s_mov_b32 s{sTH}, {f2u(LTHRESH):#x}
s_mov_b32 s{sHEAD}, 0
s_mov_b32 s{sRETRY}, 0
s_mov_b32 s{sCNT}, 0
v_lshlrev_b32 v{OVOFF}, 4, v0
v_and_b32 v1, 15, v0
v_lshrrev_b32 v2, 4, v0
s_lshl_b32 s3, s{sWAVE}, 3
s_and_b32 s3, s3, 15
v_add_u32 v3, s3, v2
v_xor_b32 v4, v1, v3
v_lshlrev_b32 v4, 4, v4
v_lshl_add_u32 v{KV0}, v2, 8, v4
v_xor_b32 v{KV1}, 64, v{KV0}
v_lshlrev_b32 v3, 1, v2
v_xor_b32 v4, v1, v3
v_lshlrev_b32 v4, 4, v4
v_lshl_add_u32 v{VV0}, v2, 8, v4
v_xor_b32 v{VV1}, 0x80, v{VV0}
v_lshrrev_b32 v3, 2, v1
v_lshlrev_b32 v4, 1, v3
v_and_b32 v4, 2, v4
v_lshrrev_b32 v5, 1, v3
v_mul_u32_u24 v5, 3, v5
v_xor_b32 v4, v4, v5
v_xor_b32 v4, v4, v2
v_lshlrev_b32 v4, 4, v4
v_lshl_add_u32 v4, v1, 6, v4
v_add_u32 v{XA}, s{sCUR}, v4
v_bfe_u32 v3, v0, 2, 2
v_and_b32 v4, 3, v0
v_and_b32 v5, 1, v2
v_lshl_or_b32 v5, v5, 2, v3
v_lshl_add_u32 v6, v2, 3, v3
v_lshlrev_b32 v6, 9, v6
v_lshl_add_u32 v6, v5, 5, v6
v_lshl_add_u32 v6, v4, 3, v6
v_add_u32 v{AA(0)}, {SB[0] + 16384}, v6
"""
    seq += mk(rest)
    if opts.get("pfcode"):
        seq += mk(f"""s_getpc_b64 s[90:91]
L_pc:
s_sub_u32 s90, s90, L_pc-attn_kernel
s_subb_u32 s91, s91, 0
s_lshl_b32 s3, s{sWAVE}, 13
v_lshl_add_u32 v1, v0, 7, s3
v_min_u32 v1, L_codeend-attn_kernel-4, v1
v_add_u32 v2, 0x8000, v1
v_min_u32 v2, L_codeend-attn_kernel-4, v2""")
        seq += [I("global_load_dword v30, v1, s[90:91]", tag="PF"), I("global_load_dword v31, v2, s[90:91]", tag="PF")]
    seq += mk([f"v_xor_b32 v{AA(u)}, {u<<5}, v{AA(0)}" for u in range(1, 8)])
    seq += mk([f"v_mov_b32 v{i}, 0" for i in range(32, 256)])
    seq += mk([f"v_accvgpr_write_b32 a{i}, 0" for i in range(224, 256)])
    if DIAG1[0]:
        seq += mk(f"""s_add_u32 s92, s64, {1<<27}
s_addc_u32 s93, s65, 0
s_mov_b32 s94, 0x100000
s_mov_b32 s95, 0x20000
s_lshl_b32 s3, s2, 10
s_lshl_b32 s{sT0}, s{sWAVE}, 8
s_add_u32 s3, s3, s{sT0}
s_add_u32 s3, s3, 0xc0000
v_mov_b32 v6, s3""")
    seq += [WAIT(vm=["S0"]), I("s_barrier")]
    for m in range(4):
        seq.append(rd_x(0, m))
    for T_ in range(8):
        seq += [rd_a(0, T_, 0), rd_a(0, T_, 1)]
    seq += stamp(1) + [WAIT(lgkm=0 if ts else "auto")]
    pg.visit(T, "init", seq)
    pg.visit(T, "lbl_p1", mk(".p2align 3\nL_p1loop:"))
    for kk in range(12):
        pg.visit(T, f"p1_{kk & 1}", p1_step(kk, loop_end=bool(kk & 1)))
    kvq = [(0, dma_k(0)), (0, dma_k(1)), (12, dma_v(0)), (0, dma_k(2)), (12, dma_v(1)), (0, dma_k(3)), (12, dma_v(2)),
           (13, dma_k(4)), (12, dma_v(3)), (13, dma_k(5)), (14, dma_v(4)), (13, dma_k(6)), (14, dma_v(5)), (13, dma_k(7)), (14, dma_v(6))]
    for kk in range(12, 16):
        pg.visit(T, f"p1_t{kk}", p1_step(kk, kvq=kvq))
    seq = stamp(2)
    seq += p2_addr()
    if opts.get("pfwo"):
        seq += mk(f"""s_load_dwordx2 s[90:91], s[{sBAD}:{sBAD+1}], 32
s_and_b32 s3, s2, 3
s_lshr_b32 s{sT0}, s2, 3
s_lshl_b32 s3, s3, 5
s_add_u32 s3, s3, s{sT0}
s_lshl_b32 s3, s3, 15
s_lshl_b32 s{sT0}, s{sWAVE}, 13
s_add_u32 s3, s3, s{sT0}
v_lshl_add_u32 v1, v0, 7, s3
s_waitcnt lgkmcnt(0)""")
        seq += [I("global_load_dword v23, v1, s[90:91]", tag="PF")]
    seq += [WAIT(vm=["K0", "K1", "V0", "K2", "V1"]), I("s_barrier")] + prime_reads(0)
    cv = conversion()
    if opts.get('fill'):
        cv = [I('s_waitcnt lgkmcnt(0)')] + fill(unpk(cv), 'v[4:7]', 0, 64)
    n = len(kvq)
    step = len(cv) // (2 * n + 1)
    pos = 8
    for _, grp in kvq:
        cv[pos:pos] = [grp[0], I("s_nop 0"), grp[1]]
        pos += step + 3
        cv[pos:pos] = grp[2:]
        pos += step + 3
    seq += cv + mk('s_nop 7') + p2_consts() + stamp(3)
    if DIAG[0]:
        seq += mk(f"s_lshl_b32 s3, s{sWAVE}, 10\ns_add_u32 s3, s3, {XBASE + 4096}\nv_mov_b32 v24, s3")
    seq += mk("s_waitcnt lgkmcnt(0)\ns_barrier")
    pg.visit(T, "conv", seq)

    def head(tr, h):
        s0 = 32 * h
        pg.visit(tr, "lbl_head", mk("L_head:"))
        pg.visit(tr, "prologue", head_prologue(s0))
        pg.visit(tr, "ep_first", epoch(s0, first=True))
        pg.visit(tr, "lbl_loop", mk(".p2align 3\nL_loop:"))
        for s in range(1, 31):
            ph = s % 8
            pg.visit(tr, f"ep_{ph}", epoch(s0 + s, ctl={6: "exit", 0: "back"}.get(ph)))
        pg.visit(tr, "lbl_last", mk("L_last:"))
        pg.visit(tr, "ep_last", epoch(s0 + 31, last=True))
        pg.visit(tr, "epilogue", fill(unpk(head_epilogue()), "v[4:7]", 0, 64) if opts.get("fill") else head_epilogue())

    def nexthead():
        o = [f"s_cmp_eq_u32 s{sHEAD}, 1", "s_cbranch_scc1 L_done", f"s_mov_b32 s{sHEAD}, 1", f"s_mov_b32 s{sRETRY}, 0",
             f"s_add_u32 s{sOOFF}, s{sOOFF}, 4096"]
        o += [f"v_accvgpr_mov_b32 a{128+i}, a{192+i}" for i in range(64)]
        o += mg_init() + ["s_nop 1", "s_branch L_head"]
        return fill(mk(o), "v[4:7]", 0, 64) if opts.get("fill") else mk(o)

    def fallback(h):
        s0 = 32 * h
        o = mk(f"""L_fallback:
s_waitcnt vmcnt(0) lgkmcnt(0)
s_barrier
s_mov_b32 s{sRETRY}, -1
s_lshl_b32 s{sT3}, s{sHEAD}, 18
s_add_u32 s{sT3}, s{sT3}, s{sKVL}
s_mov_b32 s{sKOFF}, s{sT3}
s_mov_b32 s{sCNT}, 0
L_maxloop:""")
        d = dma_k(s0)
        o += [d[0], I("s_nop 0"), d[1], d[2], d[3]] + mk("s_waitcnt vmcnt(0)\ns_barrier")
        o += [rd_k(s0, kt, j) for kt in range(2) for j in range(4)] + mk("s_waitcnt lgkmcnt(0)\ns_barrier")
        for qt in range(4):
            o += mk(qk_chain(s0, qt, 0, True) + qk_chain(s0, qt, 1, True))
        o += mk("s_nop 7")
        for qt in range(4):
            o += mk([f"v_max3_f32 v{MG(qt)}, v{MG(qt)}, v{S(qt,2*i)}, v{S(qt,2*i+1)}" for i in range(4)])
        o += mk(f"""s_add_u32 s{sCNT}, s{sCNT}, 1
s_cmp_lt_u32 s{sCNT}, 32
s_cbranch_scc1 L_maxloop
s_mov_b32 s{sKOFF}, s{sT3}
s_mov_b32 s{sVOFF}, s{sT3}""")
        for t in range(R):
            d = dma_k(s0 + t)
            o += [d[0], I("s_nop 0")] + d[1:]
            if t < R - 1:
                d = dma_v(s0 + t)
                o += [d[0], I("s_nop 0")] + d[1:]
        o += mk("s_waitcnt vmcnt(0)\ns_barrier") + prime_reads(s0) + mk("s_waitcnt lgkmcnt(0)\ns_barrier\ns_branch L_head")
        return o

    head(T, 0)
    pg.visit(T, "next", nexthead())
    head(T, 1)
    T2 = "fb"
    pg.traces[T2] = []
    for name, ins in pg.traces[T]:
        pg.traces[T2].append((name, ins))
        if name == "epilogue":
            break
    pg.visit(T2, "fallback", fallback(0))
    head(T2, 0)
    pg.visit(T2, "next", nexthead())
    head(T2, 1)
    pg.visit(T2, "fallback", fallback(1))
    head(T2, 1)
    end = mk("L_done:")
    if ts:
        end += mk(f"""s_memtime s[{sTS+8}:{sTS+9}]
s_memrealtime s[{sTS+10}:{sTS+11}]
s_waitcnt lgkmcnt(0)
s_add_u32 s{sK}, s64, {1<<27}
s_addc_u32 s{sK+1}, s65, 0
s_mov_b32 s{sK+2}, 0x100000
s_mov_b32 s{sK+3}, 0x20000
v_mov_b32 v32, s{sTS}
v_mov_b32 v33, s{sTS+2}
v_mov_b32 v34, s{sTS+4}
v_mov_b32 v35, s{sTS+6}
v_mov_b32 v36, s{sTS+8}
v_mov_b32 v37, s{sTS+10}
v_mov_b32 v38, s66
v_mov_b32 v39, s68
s_lshl_b32 s3, s2, 7
s_lshl_b32 s{sT0}, s{sWAVE}, 5
s_add_u32 s3, s3, s{sT0}
v_mov_b32 v40, s3
buffer_store_dwordx4 v[32:35], v40, {srd(sK)}, 0 offen
buffer_store_dwordx4 v[36:39], v40, {srd(sK)}, 0 offen offset:16""")
    if DIAG[0]:
        end += mk(f"""s_lshl_b32 s3, s{sWAVE}, 10
s_add_u32 s3, s3, {XBASE + 4096}
v_lshl_add_u32 v40, v0, 3, s3
ds_read_b64 v[32:33], v40
s_lshl_b32 s3, s2, 11
s_lshl_b32 s{sT0}, s{sWAVE}, 9
s_add_u32 s3, s3, s{sT0}
s_add_u32 s3, s3, 0x40000
v_lshl_add_u32 v40, v0, 3, s3
s_waitcnt lgkmcnt(0)
buffer_store_dwordx2 v[32:33], v40, {srd(sK)}, 0 offen""")
    end += mk("L_end:\ns_endpgm")
    pg.visit(T, "end", end)
    pg.resolve()
    errs = pg.check()
    return pg.text(), errs
```

```python
import re

REG_RE = re.compile(r"^(-|\|)?\|?([vas])(?:\[(\d+):(\d+)\]|(\d+))\|?$")
TRANS = ("v_exp_f32", "v_rcp_f32", "v_log_f32", "v_rsq_f32", "v_sqrt_f32")


def regs_of(tok):
    tok = tok.strip()
    if tok.startswith("abs(") and tok.endswith(")"):
        tok = tok[4:-1]
    if tok in ("vcc", "exec", "m0", "scc"):
        return [tok]
    if tok in ("vcc_lo", "vcc_hi"):
        return ["vcc"]
    m = REG_RE.match(tok)
    if not m:
        return []
    k = m.group(2)
    if m.group(5) is not None:
        return [k + m.group(5)]
    return [k + str(i) for i in range(int(m.group(3)), int(m.group(4)) + 1)]


class I:
    def __init__(self, text, **kw):
        self.text = text.strip()
        self.kw = kw
        self.parse()

    def parse(self):
        t = self.text.split(";")[0].strip()
        self.reads, self.writes = [], []
        self.kind = "other"
        self.srcc = []
        self.ab = []
        if t.endswith(":") or t.startswith(".") or not t:
            self.kind = "label"
            self.mn = ""
            return
        parts = t.split(None, 1)
        mn = parts[0]
        self.mn = mn
        ops = []
        if len(parts) > 1:
            ops = [o.strip() for o in re.split(r",(?![^\[]*\])", parts[1])]
            last = ops[-1].split()
            mods = last[1:]
            ops[-1] = last[0] if last else ""
        else:
            mods = []
        self.mods = mods
        R = lambda i: regs_of(ops[i]) if i < len(ops) else []
        if mn.startswith("v_mfma"):
            self.kind = "mfma"
            self.writes = R(0)
            self.ab = R(1) + R(2)
            self.srcc = R(3)
            self.reads = self.ab + self.srcc
            self.passes = 4 if "16x16x32" in mn else 8
        elif mn.startswith("v_permlane"):
            self.kind = "valu"
            self.writes = R(0) + R(1)
            self.reads = R(0) + R(1)
        elif mn.startswith("v_cmp"):
            self.kind = "valu"
            self.writes = R(0)
            self.reads = R(1) + R(2)
        elif mn.startswith("v_"):
            self.kind = "valu"
            self.writes = R(0)
            for i in range(1, len(ops)):
                self.reads += R(i)
            if mn.startswith("v_fmac") or mn.startswith("v_dot2c"):
                self.reads += R(0)
            if mn.startswith("v_cndmask") and len(ops) == 3:
                self.reads.append("vcc")
        elif mn.startswith("ds_read"):
            self.kind = "dsr"
            self.writes = R(0)
            self.reads = R(1)
        elif mn.startswith("ds_"):
            self.kind = "dsw"
            for i in range(len(ops)):
                self.reads += R(i)
        elif mn.startswith("buffer_load") or mn.startswith("global_load"):
            if "lds" in mods:
                self.kind = "dma"
                for i in range(len(ops)):
                    self.reads += R(i)
                self.reads.append("m0")
            else:
                self.kind = "vload"
                self.writes = R(0)
                for i in range(1, len(ops)):
                    self.reads += R(i)
        elif mn.startswith("buffer_store") or mn.startswith("global_store") or mn.startswith("buffer_atomic") or mn.startswith("global_atomic"):
            self.kind = "vstore"
            for i in range(len(ops)):
                self.reads += R(i)
            self.data = R(0) if mn.startswith("buffer") else R(1)
        elif mn.startswith("buffer_"):
            self.kind = "vother"
        elif mn == "s_waitcnt" or mn == "WAIT":
            self.kind = "wait"
        elif mn == "s_barrier":
            self.kind = "barrier"
        elif mn == "s_nop":
            self.kind = "nop"
            self.n = int(ops[0], 0) + 1
        elif mn.startswith("s_load") or mn.startswith("s_memtime") or mn.startswith("s_memrealtime"):
            self.kind = "smem"
            self.writes = R(0)
            self.reads = R(1)
        elif mn.startswith("s_cmp") or mn.startswith("s_cbranch") or mn.startswith("s_branch") or mn in ("s_endpgm", "s_setprio", "s_sleep"):
            self.kind = "salu"
            for i in range(len(ops)):
                self.reads += R(i)
            if "vcc" in mn:
                self.reads.append("vcc")
        elif mn.startswith("s_"):
            self.kind = "salu"
            self.writes = R(0)
            for i in range(1, len(ops)):
                self.reads += R(i)
        else:
            raise ValueError("unknown instr: " + self.text)

    def states(self):
        if self.kind == "label":
            return 0
        if self.kind == "nop":
            return self.n
        return 1


def WAIT(lgkm=None, vm=None):
    i = I("WAIT", lgkm=lgkm, vm=vm)
    return i


def mk(x):
    if isinstance(x, I):
        return [x]
    if isinstance(x, (list, tuple)):
        r = []
        for y in x:
            r += mk(y)
        return r
    return [I(l) for l in x.strip("\n").split("\n") if l.strip()]


class Gaps:
    def __init__(self, mfmas):
        self.mf = mk(mfmas)
        n = len(self.mf)
        self.sc = [[] for _ in range(n)]
        self.mem = [[] for _ in range(n)]
        self.va = [[] for _ in range(n)]

    def put(self, g, x):
        for ins in mk(x):
            if ins.kind in ("salu", "wait", "barrier", "nop", "smem", "label"):
                self.sc[g].append(ins)
            elif ins.kind in ("dsr", "dsw", "dma", "vload", "vstore"):
                self.mem[g].append(ins)
            else:
                self.va[g].append(ins)

    def cost(self, g):
        c = 0
        for i in self.mem[g]:
            c += 4 if i.kind == "dsr" else 8
        for i in self.va[g]:
            c += 8 if i.mn in TRANS else 4
        c += 4 * max(0, len(self.sc[g]) - 1)
        c += 4 * max(0, len(self.mem[g]) - 1)
        return max(0, c - 8)

    def emit(self):
        out = []
        for g, m in enumerate(self.mf):
            out.append(m)
            out += self.sc[g] + self.mem[g] + self.va[g]
        return out

    def excess(self):
        return sum(self.cost(g) for g in range(len(self.mf)))


class Prog:
    def __init__(self):
        self.order = []
        self.static = {}
        self.traces = {}

    def define(self, name, instrs):
        instrs = mk(instrs)
        assert name not in self.static, name
        self.static[name] = instrs
        self.order.append(name)
        for i in instrs:
            if i.mn == "WAIT":
                i.res_l = None
                i.res_v = None
        return instrs

    def visit(self, trace, name, instrs=None):
        if instrs is None:
            instrs = self.static[name]
        else:
            instrs = mk(instrs)
            if name not in self.static:
                self.define(name, instrs)
            st = self.static[name]
            assert len(st) == len(instrs), (name, len(st), len(instrs))
            for a, b in zip(st, instrs):
                assert a.text == b.text, (name, a.text, b.text)
        self.traces.setdefault(trace, []).append((name, instrs))

    def flat(self, trace):
        out = []
        for name, ins in self.traces[trace]:
            st = self.static[name]
            for a, b in zip(st, ins):
                out.append((a, b, name))
        return out

    def resolve(self):
        for tn in self.traces:
            fl = self.flat(tn)
            n = len(fl)
            dsq = []
            vmq = []
            for idx, (st, dy, name) in enumerate(fl):
                if dy.kind in ("dsr", "dsw"):
                    dsq.append((idx, set(dy.writes)))
                elif dy.kind in ("dma", "vload", "vstore"):
                    if not dy.kw.get("opt"):
                        vmq.append((idx, dy.kw.get("tag"), set(dy.writes)))
                elif dy.mn == "WAIT":
                    lg = dy.kw.get("lgkm")
                    if lg == "auto":
                        need = set()
                        j = idx + 1
                        while j < n:
                            d2 = fl[j][1]
                            if (d2.mn == "WAIT" and d2.kw.get("lgkm") is not None) or (d2.mn == "s_waitcnt" and "lgkmcnt" in d2.text):
                                break
                            need |= set(d2.reads) | (set(d2.writes) if d2.kind != "dsr" else set())
                            j += 1
                        N = 15
                        for k in range(len(dsq) - 1, max(-1, len(dsq) - 17), -1):
                            if dsq[k][1] & need:
                                N = min(N, len(dsq) - 1 - k)
                                break
                        st.res_l = N if st.res_l is None else min(st.res_l, N)
                    elif lg is not None:
                        st.res_l = lg
                    vm = dy.kw.get("vm")
                    if isinstance(vm, (list, tuple, set)):
                        N = 63
                        tags = set(vm)
                        for k in range(len(vmq) - 1, -1, -1):
                            if vmq[k][1] in tags:
                                N = min(N, len(vmq) - 1 - k)
                                break
                        st.res_v = N if st.res_v is None else min(st.res_v, N)
                    elif vm == "auto":
                        need = set()
                        j = idx + 1
                        while j < n:
                            d2 = fl[j][1]
                            if (d2.mn == "WAIT" and d2.kw.get("vm") is not None) or (d2.mn == "s_waitcnt" and "vmcnt" in d2.text):
                                break
                            need |= set(d2.reads) | (set(d2.writes) if d2.kind != "vload" else set())
                            j += 1
                        N = 63
                        for k in range(len(vmq) - 1, max(-1, len(vmq) - 65), -1):
                            if vmq[k][2] & need:
                                N = min(N, len(vmq) - 1 - k)
                                break
                        st.res_v = N if st.res_v is None else min(st.res_v, N)
                    elif vm is not None:
                        st.res_v = vm

    def wait_text(self, st):
        w = []
        if st.res_v is not None:
            w.append(f"vmcnt({st.res_v})")
        if st.res_l is not None:
            w.append(f"lgkmcnt({st.res_l})")
        assert w, "unresolved WAIT (segment never visited?)"
        return "s_waitcnt " + " ".join(w)

    def text(self):
        out = []
        for name in self.order:
            out.append(f"; ---- {name}")
            for i in self.static[name]:
                t = self.wait_text(i) if i.mn == "WAIT" else i.text
                out.append(t if i.kind == "label" else "    " + t)
        return "\n".join(out) + "\n"

    def check(self, verbose=True):
        errs = []
        for tn in self.traces:
            fl = self.flat(tn)
            pos = 0
            lastw = {}
            lastc = {}
            laststore = {}
            dsq = []
            vmq = []
            smem_pending = set()
            region = {}
            reads_out = {}
            for idx, (st, dy, name) in enumerate(fl):
                k = dy.kind
                if k == "label":
                    continue

                def err(msg):
                    errs.append(f"[{tn}/{name}] {msg}: {dy.text}")

                def dist(p):
                    return pos - p - 1 if True else 0
                for r in dy.reads + dy.writes:
                    w = lastw.get(r)
                    if not w:
                        continue
                    wp, wi = w
                    d = pos - wp
                    isread = r in dy.reads
                    if wi.kind == "valu" and k == "mfma" and isread and d < 2:
                        err(f"VALU->MFMA {r} dist {d}")
                    if wi.kind == "mfma":
                        need = 8 if wi.passes == 4 else 12
                        if k == "mfma":
                            if r in dy.ab and d < need:
                                err(f"MFMA D->A/B {r} dist {d}")
                            if r in dy.srcc and dy.srcc != wi.writes and d < need - 2:
                                err(f"MFMA D->C overlap {r} dist {d}")
                            if (r in dy.writes and r not in dy.srcc) and d < need - 2:
                                err(f"MFMA D->D WAW {r} dist {d}")
                        elif k in ("valu", "dsr", "dsw", "dma", "vload", "vstore") and d < need:
                            err(f"MFMA D->{k} {r} dist {d}")
                    if wi.kind == "valu" and wi.mn in TRANS and k == "valu" and isread and dy.mn not in TRANS and d < 1:
                        err(f"trans->VALU {r}")
                    if wi.kind == "valu" and dy.mn.startswith("v_permlane") and d < 2:
                        err(f"VALU->permlane {r} dist {d}")
                    if wi.kind == "valu" and dy.mn.startswith("v_read") and isread and r[0] == "v" and r != "vcc" and d < 1:
                        err(f"VALU->readlane {r}")
                    if wi.kind == "valu" and (r[0] == "s" or r == "vcc") and isread:
                        if k in ("dma", "vload", "vstore") and d < 5:
                            err(f"VALU sgpr->VMEM {r} dist {d}")
                        if k == "valu" and d < 2:
                            err(f"VALU sgpr->VALU {r} dist {d}")
                        if k == "salu" and d < 2:
                            err(f"VALU sgpr->SALU {r} dist {d} (padding policy)")
                    if r == "m0" and wi.kind == "salu" and k == "dma" and d < 1:
                        err("m0->DMA")
                    if "dpp" in dy.mn and isread and d < 2:
                        err("->DPP")
                if k == "valu":
                    for r in dy.writes:
                        c = lastc.get(r)
                        if c and pos - c[0] < (3 if c[1].passes == 4 else 7):
                            err(f"MFMA C read -> VALU write {r}")
                        s = laststore.get(r)
                        if s is not None and pos - s < 2:
                            err(f"store data WAR {r}")
                touched = set(dy.reads) | set(dy.writes)
                for q, nm in ((dsq, "ds"), (vmq, "vm")):
                    for op in q:
                        hit = set(op.writes) & touched
                        if hit and not (k == op.kind and not (set(op.writes) & set(dy.reads))):
                            err(f"use of pending {nm} result {sorted(hit)[:2]} from '{op.text}'")
                if smem_pending & touched and not (smem_pending & touched) <= {"s86", "s87", "s88", "s89"}:
                    err("use of pending smem result")
                if k == "dsr" and "rd" in dy.kw:
                    rg, content = dy.kw["rd"]
                    stt = region.get(rg)
                    if content is not None:
                        if not stt or stt["content"] != content:
                            err(f"LDS read {rg} expects {content}, has {stt and stt['content']}")
                        elif dy.kw.get("private"):
                            if stt["pending"]:
                                err(f"LDS private read {rg} before own DMA landed")
                        elif not stt["visible"]:
                            err(f"LDS read {rg} {content} not visible yet")
                    reads_out.setdefault(rg, []).append({"op": dy, "safe": False})
                if k == "dma" and "wr" in dy.kw:
                    rgs, content = dy.kw["wr"]
                    if not isinstance(rgs, (list, tuple)) or isinstance(rgs[0], str):
                        rgs = [rgs]
                    for i_r, rg in enumerate(rgs):
                        for ro in reads_out.get(rg, []):
                            if not ro["safe"]:
                                err(f"DMA into {rg} while read '{ro['op'].text}' not retired+barriered")
                                break
                        reads_out[rg] = []
                        stt = region.get(rg)
                        if i_r == 0:
                            if not stt or stt["content"] != content:
                                if stt and (stt["pending"] or not stt["visible"]) and not dy.kw.get("samewave"):
                                    err(f"DMA into {rg} while older DMA {stt['content']} may be in flight")
                                stt = region[rg] = {"content": content, "pending": [], "visible": False}
                            stt["pending"].append(dy)
                            stt["visible"] = False
                        else:
                            if stt and (stt["pending"] or not stt["visible"]):
                                err(f"DMA clobbers alias {rg} with DMA in flight")
                            region[rg] = {"content": "clobbered", "pending": [], "visible": True}
                if k == "wait":
                    if dy.mn == "WAIT":
                        lv, vv = st.res_l, st.res_v
                    else:
                        m = re.search(r"lgkmcnt\((\d+)\)", dy.text)
                        lv = int(m.group(1)) if m else None
                        m = re.search(r"vmcnt\((\d+)\)", dy.text)
                        vv = int(m.group(1)) if m else None
                    if lv is not None:
                        if lv == 0:
                            smem_pending = set()
                        dsq = dsq[len(dsq) - lv:] if lv else []
                    if vv is not None:
                        vmq = vmq[len(vmq) - vv:] if vv else []
                        ids = set(id(x) for x in vmq)
                        for stt in region.values():
                            stt["pending"] = [p for p in stt["pending"] if id(p) in ids]
                if k == "barrier":
                    ids = set(id(x) for x in dsq)
                    for rg, lst in reads_out.items():
                        for ro in lst:
                            if id(ro["op"]) not in ids:
                                ro["safe"] = True
                    for stt in region.values():
                        if not stt["pending"]:
                            stt["visible"] = True
                pos += dy.states()
                if k in ("dsr", "dsw"):
                    dsq.append(dy)
                if k in ("dma", "vload", "vstore") and not dy.kw.get("opt"):
                    vmq.append(dy)
                if k == "smem":
                    smem_pending |= set(dy.writes)
                if k == "vstore" and len(dy.data) >= 3:
                    for r in dy.data:
                        laststore[r] = pos
                for r in dy.writes:
                    lastw[r] = (pos, dy)
                if k == "mfma":
                    for r in dy.srcc:
                        lastc[r] = (pos, dy)
        if verbose:
            seen = set()
            for e in errs:
                if e not in seen:
                    print("CHECK:", e)
                    seen.add(e)
        return errs


def gap_load(G, g):
    c = 0
    for i in G.mem[g]:
        c += 4 if i.kind == "dsr" else 8
    for i in G.va[g]:
        c += 8 if i.mn in TRANS else 4
    return c


def spread(G, items, g0, g1):
    items = mk(items)
    cost = lambda i: (8 if i.mn in TRANS or i.kind in ("vstore", "dma", "vload") else 4) if i.kind not in ("salu", "nop", "wait") else 0
    total = sum(gap_load(G, g) for g in range(g0, g1 + 1)) + sum(cost(i) for i in items)
    n = g1 - g0 + 1
    level = max(8, -(-total // n))
    while True:
        g = g0
        plan = []
        load = {x: gap_load(G, x) for x in range(g0, g1 + 1)}
        cum_budget = 0
        cum_used = 0
        ok = True
        k = 0
        used_va = set()
        for g in range(g0, g1 + 1):
            cum_budget += level
            cum_used += load[g]
            while k < len(items):
                it = items[k]
                if it.kind in ("vstore", "dsw", "dsr", "dma", "vload"):
                    if g in used_va or G.mem[g] or any(p[0] == g and p[1].kind in ("vstore", "dsw", "dsr", "dma", "vload") for p in plan):
                        break
                if cum_used + cost(it) > cum_budget:
                    break
                plan.append((g, it)); cum_used += cost(it); used_va.add(g); k += 1
            cum_budget = min(cum_budget, cum_used + 4)
        if k == len(items):
            break
        level += 1
    for g, it in plan:
        if it.kind in ("salu", "nop", "wait"):
            G.va[g].append(it)
        else:
            G.put(g, it)
    return plan[-1][0] if plan else g0


def autonop(seq):
    out = []
    pos = 0
    lastw, lastc, lastst = {}, {}, {}
    for dy in seq:
        k = dy.kind
        need = 0
        if k not in ("label",):
            for r in dy.reads + dy.writes:
                w = lastw.get(r)
                if not w:
                    continue
                wp, wi = w
                d = pos - wp
                rd = r in dy.reads
                req = 0
                if wi.kind == "valu" and k == "mfma" and rd: req = 2
                if wi.kind == "mfma":
                    nn = 8 if wi.passes == 4 else 12
                    if k == "mfma":
                        if r in dy.ab: req = nn
                        elif r in dy.srcc and dy.srcc != wi.writes: req = nn - 2
                        elif r in dy.writes and r not in dy.srcc: req = nn - 2
                    elif k in ("valu", "dsr", "dsw", "dma", "vload", "vstore"): req = nn
                if wi.kind == "valu" and wi.mn in TRANS and k == "valu" and rd and dy.mn not in TRANS: req = max(req, 1)
                if wi.kind == "valu" and dy.mn.startswith("v_permlane"): req = max(req, 2)
                if wi.kind == "valu" and dy.mn.startswith("v_read") and rd and r[0] == "v" and r != "vcc": req = max(req, 1)
                if wi.kind == "valu" and (r[0] == "s" or r == "vcc") and rd:
                    req = max(req, 5 if k in ("dma", "vload", "vstore") else 2)
                if r == "m0" and wi.kind == "salu" and k == "dma": req = max(req, 1)
                need = max(need, req - d)
            if k == "valu":
                for r in dy.writes:
                    c = lastc.get(r)
                    if c: need = max(need, (3 if c[1].passes == 4 else 7) - (pos - c[0]))
                    s = lastst.get(r)
                    if s is not None: need = max(need, 2 - (pos - s))
        if need > 0:
            out.append(I(f"s_nop {need - 1}"))
            pos += need
        out.append(dy)
        pos += dy.states()
        if k == "vstore" and len(dy.data) >= 3:
            for r in dy.data: lastst[r] = pos
        for r in dy.writes: lastw[r] = (pos, dy)
        if k == "mfma":
            for r in dy.srcc: lastc[r] = (pos, dy)
    return out
```

```python
import struct
from asmlib import *

R = 8
KBASE, VBASE = 0, 65536
WOFFL = 81920
FLAG = 131072
OWS_BRANCH = 120 * 128 * 1024
MGWS = 32 << 20
QSCALE = 1.4426950408889634 / (128 ** 0.5)
LTHRESH = float(2 ** 30)
POL = {"x": "", "wq": "nt", "ost": "sc1", "kv": "nt"}
OPT = {}
KNAME = 'concat_heads__mha_block_cached__gqa_block_cached__near_ridge_kernel'
FLW = 2 << 20
BIG = 0x40000000
FLAG1 = 57344


def f2u(f):
    return struct.unpack("<I", struct.pack("<f", f))[0]


sK, sV, sX, sW, sO, sPF, sMG = 4, 8, 12, 16, 20, 92, 96
sWAVE, sKOFF, sVOFF, sXOFF, sWOFF = 24, 25, 26, 27, 28
sKVL, sSTL = 29, 30
sRD, sDMA, sDELTA = 31, 32, 33
sCNT, sUNUSED, sMODE, sOOFF, sT0, sT1, sT2, sT3 = 36, 37, 38, 39, 40, 41, 42, 43
sARG = 44
sC, sTH, sROT, sBAD = 46, 48, 49, 47
sKX, sVX, sXX, sWX, sROTX, sROTW = 50, 51, 52, 53, 54, 55
sOUTP, sDBG, sD = 82, 84, 12
sOB, sWB, sOX, sWX2, sSTG, sMASK, sREQ, sDOFF, sDOFF1, sCTR, sSIG, sOWN, sSPIN = 56, 57, 58, 59, 60, 61, 62, 63, 34, 35, 37, 100, 101
sINI, sNEED = 90, 91
sTS = 70
srd = lambda b: f"s[{b}:{b+3}]"

AA = lambda u: 8 + u
XA = 16
XV = lambda qt: 17 + qt
WV = lambda i: 21 + i
KV0, KV1, VV0, VV1 = 25, 26, 27, 28
OVOFF, PFV, DUMMY = 29, 30, 31
KA = lambda j: 17 + j
VA = lambda t: 8 + t
S = lambda qt, e: 32 + qt * 8 + e
P = lambda qt: 64 + qt * 4
NM = lambda qt: 80 + qt * 4
LS = {1: 96, 3: 100}
ONES = 104
MG = lambda hh, qt: (108 if hh == 0 else 21) + qt
LV = {0: 112, 2: 113}
RC = lambda qt: 114 + qt
MT = (118, 119)
PK = lambda i: 120 + 4 * (i & 1)
O = lambda qt, t: 128 + (qt * 8 + t) * 4
KF = lambda par, kt, j: par * 32 + (kt * 4 + j) * 4
VF = lambda par, t: 64 + par * 32 + t * 4
Q = lambda hh, qt, j: 128 + hh * 64 + (qt * 4 + j) * 4
AF = lambda T: 128 + T * 4
XF = lambda par, qt: 192 + par * 16 + qt * 4
XP = lambda ks, qt: 64 + (ks * 4 + qt) * 4
PF = lambda p, ti, ks: ((p & 1) ^ 1) * 32 + (ti * 4 + ks) * 4
K0F = lambda kt, j: 128 + (kt * 4 + j) * 4
ACCB = {1: 128, 2: 32, 3: 64, 4: 96, 5: 160, 6: 192, 7: 224}


def ACC(T, qt):
    p = T >> 1
    i = ((T & 1) * 4 + qt) * 4
    return ("a", 224 + i) if p == 0 else ("v", ACCB[p] + i)


def rr(k, b, n=4):
    return f"{k}[{b}:{b+n-1}]"


MF = "v_mfma_f32_16x16x32_bf16"
idx = lambda st: (st + 4) % 5


class Seq:
    def __init__(self):
        self.mf = []
        self.puts = []

    def base(self):
        return len(self.mf)

    def put(self, g, x):
        self.puts.append((g, x))

    def gaps(self):
        G = Gaps(self.mf)
        for g, x in self.puts:
            G.put(g, x)
        return G


def unit_alias(kind, slot):
    u = (slot >> 1) + (4 if kind == "V" else 0)
    return [("X", u)] if u < 5 else [("W", u - 5)]


def dma_k(tile):
    slot = tile % R
    wr = ([("K", slot)] + unit_alias("K", slot), f"K{tile}")
    p = POL["kv"]
    return [I(f"s_add_u32 m0, s{sKVL}, {KBASE + slot*8192}"),
            I(f"buffer_load_dwordx4 v{KV0}, {srd(sK)}, s{sKX} offen {p} lds", tag=f"K{tile}", wr=wr),
            I(f"buffer_load_dwordx4 v{KV1}, {srd(sK)}, s{sKX} offen offset:1024 {p} lds", tag=f"K{tile}", wr=wr),
            I(f"s_add_u32 s{sKOFF}, s{sKOFF}, 8192"), I(f"s_xor_b32 s{sKX}, s{sKOFF}, s{sROT}")]


def dma_v(tile):
    slot = tile % R
    wr = ([("V", slot)] + unit_alias("V", slot), f"V{tile}")
    p = POL["kv"]
    return [I(f"s_add_u32 m0, s{sKVL}, {VBASE + slot*8192}"),
            I(f"buffer_load_dwordx4 v{VV0}, {srd(sV)}, s{sVX} offen {p} lds", tag=f"V{tile}", wr=wr),
            I(f"buffer_load_dwordx4 v{VV1}, {srd(sV)}, s{sVX} offen offset:1024 {p} lds", tag=f"V{tile}", wr=wr),
            I(f"s_add_u32 s{sVOFF}, s{sVOFF}, 8192"), I(f"s_xor_b32 s{sVX}, s{sVOFF}, s{sROT}")]


def rd_k(tile, kt, j, dst=None):
    slot = tile % R
    d = dst or rr('a', KF(tile & 1, kt, j))
    return I(f"ds_read_b128 {d}, v{KA(j)} offset:{slot*8192 + kt*4096}", rd=(("K", slot), f"K{tile}"))


def rd_v(tile, t, sec):
    slot = tile % R
    return I(f"ds_read_b64_tr_b16 {rr('a', VF(tile & 1, t) + 2*sec, 2)}, v{VA(t)} offset:{slot*8192 + sec*4096}", rd=(("V", slot), f"V{tile}"))


def kv_alias(u):
    return [("K", 2 * u), ("K", 2 * u + 1)] if u < 4 else ([("V", 2 * (u - 4)), ("V", 2 * (u - 4) + 1)] if u < 8 else [])


def st_dma_w(st, i):
    return I(f"buffer_load_dwordx4 v{WV(i)}, {srd(sW)}, s{sWX} offen offset:{i*1024} {POL['wq']} lds", tag=f"S{st}",
             wr=([("W", idx(st))] + kv_alias(idx(st) + 5), f"S{st}"))


def st_dma_x(st, qt):
    return I(f"buffer_load_dwordx4 v{XV(qt)}, {srd(sX)}, s{sXX} offen offset:{qt*1024} {POL['x']} lds", tag=f"S{st}",
             wr=([("X", idx(st))] + kv_alias(idx(st)), f"S{st}"))


W_ADV = lambda: mk(f"s_add_u32 s{sWOFF}, s{sWOFF}, 262144\ns_xor_b32 s{sWX}, s{sWOFF}, s{sROTW}")
X_ADV = lambda: mk(f"s_add_u32 s{sXOFF}, s{sXOFF}, 64\ns_xor_b32 s{sXX}, s{sXOFF}, s{sROTX}")


def stage_items(st):
    r = []
    for i in range(4):
        r.append(([I(f"s_add_u32 m0, s{sSTL}, {WOFFL + idx(st)*16384}")] if i == 0 else [], st_dma_w(st, i), W_ADV() if i == 3 else []))
    for q in range(4):
        r.append(([I(f"s_add_u32 m0, s{sSTL}, {idx(st)*16384}")] if q == 0 else [], st_dma_x(st, q), X_ADV() if q == 3 else []))
    return r


def rd_a(st, T, sec, dst=None, off=0):
    d = dst if dst is not None else AF(T)
    return I(f"ds_read_b64_tr_b16 {rr('a', d + 2*sec, 2)}, v{AA(T & 7)} offset:{off + sec*2048 + (T >> 3)*256}", rd=(("W", idx(st)), f"S{st}"))


def rd_x(st, qt, dst=None, off=0):
    d = dst if dst is not None else XF(st & 1, qt)
    return I(f"ds_read_b128 {rr('a', d)}, v{XA} offset:{off + qt*1024}", rd=(("X", idx(st)), f"S{st}"))


def add_step(Z, kk, L=None, dq=None, loop_end=None, second=True, vmneed=None):
    b = Z.base()
    for T in range(16):
        for qt in range(4):
            k, a = ACC(T, qt)
            Z.mf.append(f"{MF} {rr(k, a)}, {rr('a', AF(T))}, {rr('a', XF(kk & 1, qt))}, {rr(k, a)}")
    for T in range(8, 16):
        g = (T - 8) // 2 * 6 + (T & 1) * 2
        Z.put(b + g, rd_a(kk, T, 0)); Z.put(b + g + 1, rd_a(kk, T, 1))
    Z.put(b + 19, f"s_add_u32 s{sT0}, s{sRD}, 16384")
    Z.put(b + 20, f"s_cmp_eq_u32 s{sT0}, {5*16384}")
    Z.put(b + 21, f"s_cselect_b32 s{sT0}, 0, s{sT0}")
    Z.put(b + 22, f"s_sub_u32 s{sDELTA}, s{sT0}, s{sRD}")
    Z.put(b + 23, f"s_mov_b32 s{sRD}, s{sT0}")
    for u in range(8):
        Z.put(b + 23 + u // 2, f"v_add_u32 v{AA(u)}, s{sDELTA}, v{AA(u)}")
    Z.put(b + 27, f"v_add_u32 v{XA}, s{sDELTA}, v{XA}")
    Z.put(b + 30, WAIT(lgkm=0, vm=vmneed or [f"S{kk+1}"]))
    Z.put(b + 31, "s_barrier")
    Z.put(b + 11, WAIT(lgkm="auto"))
    if second:
        order = [("x", 0), ("x", 1), ("a", 0), ("a", 1), ("x", 2), ("x", 3)] + [("a", T) for T in range(2, 8)]
        slots = [32, 33, 34, 35, 36, 38, 40, 41, 42, 43, 44, 46, 48, 49, 50, 51, 52, 54, 56, 57]
        for kind, v in order:
            if kind == "x":
                Z.put(b + slots.pop(0), rd_x(kk + 1, v))
            else:
                Z.put(b + slots.pop(0), rd_a(kk + 1, v, 0)); Z.put(b + slots.pop(0), rd_a(kk + 1, v, 1))
        Z.put(b + 62, WAIT(lgkm="auto"))
    if L is not None:
        for g, qt in ((4, 1), (10, 2), (16, 3)):
            Z.put(b + g, st_dma_x(kk - 1 + L, qt))
        xa = X_ADV(); Z.put(b + 17, xa[0]); Z.put(b + 18, xa[1])
        Z.put(b + 24, f"s_add_u32 s{sDMA}, s{sDMA}, 16384")
        Z.put(b + 25, f"s_cmp_ge_u32 s{sDMA}, {5*16384}")
        Z.put(b + 26, f"s_cselect_b32 s{sDMA}, s{sSTL}, s{sDMA}")
        Z.put(b + 36, f"s_add_u32 m0, s{sDMA}, {WOFFL}")
        for n, g in enumerate((37, 45, 47, 53)):
            Z.put(b + g, st_dma_w(kk + L, n))
        wa = W_ADV(); Z.put(b + 54, wa[0]); Z.put(b + 56, wa[1])
        Z.put(b + 55, f"s_mov_b32 m0, s{sDMA}")
        Z.put(b + 60, st_dma_x(kk + L, 0))
    if dq is not None:
        f1 = [4, 5, 10, 16, 17, 22, 28]
        f2 = [37, 39, 45, 47, 53, 55, 59] if second else []
        for free, bar in ((f1, kk - 1), (f2, kk)):
            for g in free:
                if not dq or dq[0][0] > bar:
                    break
                _, (pre, d, post) = dq.pop(0)
                Z.put(b + g - 1, ("late", pre)); Z.put(b + g, d); Z.put(b + g, ("late", post))
    if OPT.get("diag1"):
        Z.put(b + 0, "s_memtime s[86:87]")
        Z.put(b + 28, "v_mov_b32 v2, s86"); Z.put(b + 29, "buffer_store_dword v2, v1, s[88:91], 0 offen"); Z.put(b + 30, "v_add_u32 v1, 4, v1")
    if loop_end:
        Z.put(b + 58, f"s_add_u32 s{sCNT}, s{sCNT}, 1")
        Z.put(b + 63, f"s_cmp_lt_u32 s{sCNT}, {loop_end}")
    return b


def mkgaps(Z):
    G = Gaps(Z.mf)
    for g, x in Z.puts:
        if isinstance(x, tuple) and x and x[0] == "late":
            G.va[g] += mk(x[1])
        else:
            G.put(g, x)
    return G


MSUM = (1, 3)


def qk_chain(tile, qt, kt, czero=False, hh=0, kf=None):
    d = S(qt, 4 * kt)
    r = []
    for j in range(4):
        c = ("0" if czero else rr("v", NM(qt))) if j == 0 else rr("v", d)
        a = rr("v", kf(kt, j)) if kf else rr("a", KF(tile & 1, kt, j))
        r.append(f"{MF} {rr('v', d)}, {a}, {rr('a', Q(hh, qt, j))}, {c}")
    return r


def sm_exp(qt, e): return f"v_exp_f32 v{S(qt,e)}, v{S(qt,e)}"
def sm_add(qt, e): return f"v_add_f32 v{LV[qt]}, v{LV[qt]}, v{S(qt,e)}"
def sm_cvt(qt, i): return f"v_cvt_pk_bf16_f32 v{P(qt)+i}, v{S(qt,2*i)}, v{S(qt,2*i+1)}"


def pv_list(s, b, zero):
    pv = []
    for t in range(8):
        o = rr("v", O(b, t))
        pv.append(f"{MF} {o}, {rr('a', VF(s & 1, t))}, {rr('v', P(b))}, {'0' if zero else o}")
    if b in MSUM:
        l = rr("v", LS[b])
        pv.append(f"{MF} {l}, {rr('v', ONES)}, {rr('v', P(b))}, {'0' if zero else l}")
    return pv


def add_epoch(Z, s, hh=0, qk_zero=False, pv_zero=False, ctl=None):
    reads = [rd_k(s + 2, 0, j) for j in range(4)] + [rd_v(s + 1, t, sec) for t in range(8) for sec in range(2)] + [rd_k(s + 2, 1, j) for j in range(4)]
    offs = []
    for b in range(4):
        o = Z.base()
        offs.append(o)
        Z.mf += qk_chain(s + 1, b, 0, qk_zero, hh) + pv_list(s, b, pv_zero) + qk_chain(s + 1, b, 1, qk_zero, hh)
        sq = (b + 1) & 3
        for e in range(8):
            Z.put(o + 2 * e, sm_exp(sq, e))
        if b in (0, 2):
            dsg = [1, 3, 5, 7, 11, 15]
            for i in range(4):
                Z.put(o + 4 * i + 3, sm_cvt(sq, i))
            if b == 0:
                Z.put(o + 1, sm_add(0, 6)); Z.put(o + 5, sm_add(0, 7))
            D = int(OPT.get('dist', R))
            d = dma_k(s + D) if b == 0 else dma_v(s + D - 1)
            Z.put(o + 8, d[0]); Z.put(o + 9, d[1]); Z.put(o + 13, d[2]); Z.put(o + 12, d[3]); Z.put(o + 14, d[4])
        else:
            dsg = [1, 5, 7, 9, 13, 15]
            for gg, e in ((1, 0), (3, 1), (5, 2), (9, 3), (11, 4), (13, 5)):
                Z.put(o + gg, sm_add(sq, e))
            for i in range(4):
                Z.put(o + 4 * i + 3, sm_cvt(sq, i))
            if b == 1:
                Z.put(o + 16, sm_add(sq, 6)); Z.put(o + 16, sm_add(sq, 7))
        for gg in dsg:
            Z.put(o + gg, reads.pop(0))
        if OPT.get("slow"):
            Z.put(o + 6, ("late", f"s_nop {int(OPT['slow']) - 1}"))
        if b == 0:
            Z.put(o + 3, WAIT(lgkm="auto")); Z.put(o + 11, WAIT(lgkm="auto"))
        if b == 3:
            late = isinstance(ctl, int)
            Z.put(o + 15, WAIT(lgkm="auto", vm=None if late else [f"K{s+3}", f"V{s+2}"]))
            if ctl == "exit":
                Z.put(o + 12, f"s_add_u32 s{sCNT}, s{sCNT}, 1"); Z.put(o + 14, f"s_and_b32 s{sT0}, s{sCNT}, 3")
            if isinstance(ctl, int):
                Z.put(o + 14, f"s_cmp_eq_u32 s{sCNT}, 7")
            if late:
                Z.put(o + 16, f"s_cbranch_scc1 L_late{ctl}")
            else:
                Z.put(o + 16, "s_barrier")
        if OPT.get("diag"):
            if b == 0:
                Z.put(o + 0, "s_memtime s[86:87]"); Z.put(o + 1, "s_memrealtime s[88:89]")
            if b == 3:
                Z.put(o + 2, "v_mov_b32 v6, s86"); Z.put(o + 2, "v_mov_b32 v7, s88")
                Z.put(o + 3, "ds_write_b64 v16, v[6:7]"); Z.put(o + 4, "v_add_u32 v16, 8, v16")
    offs.append(Z.base())
    return offs


def epoch(s, ctl=None):
    Z = Seq()
    add_epoch(Z, s, ctl=ctl)
    G = mkgaps(Z)
    if not OPT.get("diag") and not OPT.get("slow"):
        assert G.excess() == 0, G.excess()
    out = G.emit()
    if ctl == "exit":
        out += mk("s_cbranch_scc0 L_exit")
    return out


def xred(reg, tmp, op):
    return [f"v_mov_b32 v{tmp}, v{reg}", f"v_permlane16_swap_b32 v{reg}, v{tmp}", f"{op} v{reg}, v{reg}, v{tmp}",
            f"v_mov_b32 v{tmp}, v{reg}", f"v_permlane32_swap_b32 v{reg}, v{tmp}", f"{op} v{reg}, v{reg}, v{tmp}"]


def maxops(hh, qt):
    m, t = MT
    r = [f"v_max3_f32 v{m}, v{S(qt,0)}, v{S(qt,1)}, v{MG(hh,qt)}", f"v_max3_f32 v{t}, v{S(qt,2)}, v{S(qt,3)}, v{S(qt,4)}",
         f"v_max3_f32 v{m}, v{m}, v{S(qt,5)}, v{S(qt,6)}", f"v_max3_f32 v{m}, v{m}, v{t}, v{S(qt,7)}"]
    r += xred(m, t, "v_max_f32")
    r += [f"v_sub_f32 v{S(qt,e)}, v{S(qt,e)}, v{m}" for e in range(8)]
    r += [f"v_sub_f32 v{NM(qt)+i}, 0, v{m}" for i in range(4)]
    return r


def conv_unit(p, qt):
    hh, j = p >> 2, p & 3
    o = []
    (k0, b0), (k1, b1) = ACC(2 * p, qt), ACC(2 * p + 1, qt)
    if k0 == "a":
        o += [f"v_accvgpr_read_b32 v{1+x}, a{b0+x}" for x in range(4)] + [f"v_accvgpr_read_b32 v{21+x}, a{b1+x}" for x in range(4)]
        b0, b1 = 1, 21
    o += [f"v_mul_f32 v{b+x}, s{sC}, v{b+x}" for b in (b0, b1) for x in (0, 1)]
    o += [f"v_cvt_pk_bf16_f32 v{b0}, v{b0}, v{b0+1}", f"v_cvt_pk_bf16_f32 v{b1}, v{b1}, v{b1+1}"]
    o += [f"v_mul_f32 v{b+x}, s{sC}, v{b+x}" for b in (b0, b1) for x in (2, 3)]
    q = Q(hh, qt, j)
    o += [f"v_cvt_pk_bf16_f32 v{b0+2}, v{b0+2}, v{b0+3}", f"v_cvt_pk_bf16_f32 v{b1+2}, v{b1+2}, v{b1+3}",
          f"v_permlane16_swap_b32 v{b0}, v{b1}",
          f"v_accvgpr_write_b32 a{q}, v{b0}", f"v_accvgpr_write_b32 a{q+2}, v{b1}",
          f"v_permlane16_swap_b32 v{b0+2}, v{b1+2}",
          f"v_accvgpr_write_b32 a{q+1}, v{b0+2}", f"v_accvgpr_write_b32 a{q+3}, v{b1+2}"]
    if OPT.get("nomul"):
        o = [x for x in o if not x.startswith("v_mul")]
    return o


def lfin(qt):
    r = RC(qt)
    if qt in MSUM:
        o = [f"v_cmp_nge_f32 vcc, s{sTH}, v{LS[qt]}", f"v_rcp_f32 v{r}, v{LS[qt]}"]
    else:
        l = LV[qt]
        o = xred(l, r, "v_add_f32") + [f"v_cmp_nge_f32 vcc, s{sTH}, v{l}", f"v_rcp_f32 v{r}, v{l}", f"v_mov_b32 v{l}, 0"]
    return o


def lflag():
    return [f"s_or_b32 s{sBAD}, s{sBAD}, vcc_lo", f"s_or_b32 s{sBAD}, s{sBAD}, vcc_hi"]


PKN = [0]


def st_o(src, qt, u):
    so = sT3 if qt == 3 else (sOOFF, sT1, sT2)[qt]
    return I(f"buffer_store_dwordx4 {src}, v{OVOFF}, {srd(sO)}, s{so} offen offset:{u*1024} {POL['ost']}", tag="ST")


def o_unit(qt, u, mode="st"):
    b = O(qt, 2 * u)
    t = PK(PKN[0]); PKN[0] += 1
    o = []
    r = RC(qt)
    for i in range(4):
        if mode == "pk":
            sel = "op_sel_hi:[1,0]" if r % 2 == 0 else "op_sel:[0,1] op_sel_hi:[1,1]"
            o.append(f"v_pk_mul_f32 v[{b+2*i}:{b+2*i+1}], v[{b+2*i}:{b+2*i+1}], v[{r & ~1}:{(r & ~1) + 1}] {sel}")
        else:
            o += [f"v_mul_f32 v{b+2*i}, v{r}, v{b+2*i}", f"v_mul_f32 v{b+2*i+1}, v{r}, v{b+2*i+1}"]
        o.append(f"v_cvt_pk_bf16_f32 v{t+i}, v{b+2*i}, v{b+2*i+1}")
        if mode == "park":
            o.append(f"v_accvgpr_write_b32 a{Q(1, qt, u) + i}, v{t+i}")
    if mode != "park":
        o.append(st_o(rr('v', t), qt, u))
    return o


def o_offsets():
    return [f"s_add_u32 s{sT1}, s{sOOFF}, 4096", f"s_add_u32 s{sT2}, s{sOOFF}, 8192", f"s_add_u32 s{sT3}, s{sOOFF}, 12288",
            f"s_cmp_eq_u32 s{sWAVE}, 3", f"s_cselect_b32 s{sT3}, {OWS_BRANCH}, s{sT3}"]


def o_epi(qt, mode="st"):
    o = lfin(qt)
    first = o_unit(qt, 0, mode)
    o += first[:3] + lflag() + first[3:]
    for u in range(1, 4):
        o += o_unit(qt, u, mode)
    return o


def boundary(s):
    Z = Seq()
    PKN[0] = 0
    A = add_epoch(Z, s, hh=1, qk_zero=True)
    B = add_epoch(Z, s + 1, hh=0, pv_zero=True)
    for g, x in zip((2, 4, 5, 6, 7), o_offsets()):
        Z.put(A[0] + g, x)
    Z.put(B[2] + 0, f"s_lshl_b32 s{sT0}, s{sWAVE}, 2"); Z.put(B[2] + 1, f"s_add_u32 s{sT0}, s{sT0}, {FLAG}")
    Z.put(A[0] + 1, f"v_mov_b32 v{DUMMY}, 0"); Z.put(A[1] + 3, I(poll_issue(2).text.replace(" sc1", ""), tag="POLL"))
    Z.put(B[3] + 3, "ds_write_b32 v2, v1")
    Z.put(B[3] + 8, WAIT(lgkm=2)); Z.put(B[3] + 10, "s_barrier"); Z.put(B[3] + 11, "ds_read_b128 v[4:7], v3")
    G = mkgaps(Z)
    qm = [f"v_accvgpr_mov_b32 a{128+i}, a{192+i}" for i in range(64)]
    e = [o_epi(q, "park") for q in range(4)]
    n2 = len(lfin(2)) + 5
    spread(G, qm, A[0], A[1] + 2)
    spread(G, maxops(1, 0) + e[0], A[1] + 3, A[2] + 10)
    spread(G, maxops(1, 1), A[2] + 11, A[3] + 0)
    spread(G, e[1], A[3] + 1, B[0] + 2)
    spread(G, maxops(1, 2) + e[2][:n2], B[0] + 3, B[0] + 12)
    spread(G, maxops(1, 3), B[0] + 13, B[1] + 2)
    spread(G, e[2][n2:], B[1] + 3, B[2] + 1)
    spread(G, e[3][:12] + [f"v_mov_b32 v1, s{sBAD}", f"v_mov_b32 v2, s{sT0}", f"v_mov_b32 v3, {FLAG}"] + e[3][12:], B[2] + 2, B[3] + 2)
    spread(G, oaddr(), B[3] + 4, B[3] + 15)
    print("boundary est cycles:", sum(16 + G.cost(g) for g in range(len(G.mf))))
    chk = [WAIT(vm=["POLL"])] + mk(f"v_readfirstlane_b32 s{sT0}, v{POLLV}\ns_cmp_ge_u32 s{sT0}, s{sNEED}\ns_cbranch_scc0 L_spin2\nL_spin2b:")
    return autonop(G.emit() + chk + badcheck("L_loop", lgkm=2) + mk("s_branch L_restart"))


RESTART = f"""L_restart:
s_mov_b32 s{sMODE}, 1
s_waitcnt vmcnt(0) lgkmcnt(0)
s_barrier
s_branch L_start"""


def badcheck(ok, lgkm=0):
    return mk(f"""s_waitcnt lgkmcnt({lgkm})
v_or3_b32 v4, v4, v5, v6
v_or_b32 v4, v4, v7
v_readfirstlane_b32 s{sT0}, v4
s_cmp_eq_u32 s{sT0}, 0
s_cbranch_scc1 {ok}
s_cmp_eq_u32 s{sMODE}, 0
s_cbranch_scc0 {ok}""")


LATE = [(q, u) for q in range(4) for u in range(4)]
LATE_PLAN = {7: (0, 3), 8: (3, 6), 1: (6, 9), 2: (9, 12), 3: (12, 16)}
W2BASE = 98304
W2SLOT = [2, 3, 1, 0]
WV2 = lambda i: 21 + i
BV = lambda qi: 1 + qi
OUTV, POLLV, POLLA = 3, 16, 30
AA2 = lambda n: 17 + n
ACC2 = lambda qi, n: 32 + (qi * 4 + n) * 4
AF2 = lambda par, n: 64 + (par * 4 + n) * 4
BF = lambda st, ks, qi: (((st % 4) * 4 + ks) * 2 + qi) * 4


def oaddr():
    a, b = MT
    return f"""v_lshrrev_b32 v{a}, 3, v0
v_and_b32 v{b}, 6, v{a}
v_xor_b32 v{b}, v{b}, v0
v_and_b32 v{b}, 7, v{b}
v_lshlrev_b32 v{b}, 4, v{b}
v_lshl_add_u32 v{WV2(0)}, v{a}, 10, v{b}
v_add_u32 v{WV2(1)}, 7168, v{WV2(0)}
v_add_u32 v{WV2(2)}, {2*7168}, v{WV2(0)}
v_add_u32 v{WV2(3)}, {3*7168}, v{WV2(0)}""".split("\n")


def w2_alias(st):
    u = 6 + W2SLOT[st % 4]
    return [("W2", st % 4)] + kv_alias(u) + [("W", u - 5)]


def w2_dma(st):
    return [I(f"s_add_u32 m0, s{sSTL}, {W2BASE + W2SLOT[st % 4]*16384}")] + \
           [I(f"buffer_load_dwordx4 v{WV2(i)}, {srd(sPF)}, s{sWX2} offen offset:{i*1024} lds", tag=f"T{st}", wr=(w2_alias(st), f"T{st}")) for i in range(4)]


def b_loads(st):
    return [I(f"buffer_load_dwordx4 {rr('a', BF(st, ks, qi))}, v{BV(qi)}, {srd(sO)}, s{sOX} offen offset:{ks*1024} sc1", tag=f"T{st}") for ks in range(4) for qi in range(2)]


def head_of(reg, which):
    o = [f"s_xor_b32 s3, s{reg}, s{sMASK}", "s_and_b32 s3, s3, 15", "s_lshl_b32 s3, s3, 1", f"s_lshr_b32 s{sT0}, s{reg}, 4", f"s_add_u32 s3, s3, s{sT0}"]
    if "o" in which:
        o += [f"s_mul_i32 s{sOX}, s3, {120*4096}", f"s_add_u32 s{sOX}, s{sOX}, s{sOB}"]
    if "w" in which:
        o += [f"s_lshl_b32 s3, s3, 17", f"s_add_u32 s{sWX2}, s3, s{sWB}"]
    return o


def signal(half):
    bit = 1 << half
    return mk(f"""s_and_b32 s{sT0}, s{sSIG}, {bit}
s_cselect_b32 s{sT0}, {BIG}, s{sOWN}
s_or_b32 s{sSIG}, s{sSIG}, {bit}
v_lshl_add_u32 v{MT[0]}, v0, 22, s{sT0}
v_mov_b32 v{MT[1]}, 1""") + [I(f"buffer_atomic_add v{MT[1]}, v{MT[0]}, {srd(sMG)}, 0 offen offset:{256*half}", tag="SIG", opt=True)]


def announce():
    return mk(f"""L_announce:
v_mov_b32 v6, 0
v_mov_b32 v7, 1
s_mov_b64 exec, 1
global_atomic_add v6, v7, s[{sDBG}:{sDBG+1}]
s_mov_b64 exec, -1
s_branch L_annback""")


def late_block(ph, s):
    o = mk(f"L_late{ph}:")
    need = [t for t in (f"K{s+3}", f"V{s+2}") if int(t[1:]) < 64]
    if ph == 5:
        need = need + ["ST"]
    if need:
        o.append(WAIT(vm=need))
    o.append(I("s_barrier"))
    if ph == int(OPT.get("pfph", 7)):
        o.append(I(f"buffer_load_dword v{DUMMY}, v{PFV}, {srd(sPF)}, 0 offen", tag="PF"))
    if ph in LATE_PLAN:
        lo, hi = LATE_PLAN[ph]
        o += [st_o(rr("a", Q(1, q, u)), q, u) for q, u in LATE[lo:hi]]
    if ph == 5:
        o += signal(0)
    if ph in (4, 5):
        st = ph - 4
        o += mk([f"s_mov_b32 s{sSTG}, {st}"] + head_of(sSTG, "w")) + w2_dma(st)[:1] + mk("s_nop 0") + w2_dma(st)[1:]
    return autonop(o + mk(f"s_branch L_lateback{ph}"))


def poll_issue(half):
    if half == 2:
        return I(f"global_load_dword v{POLLV}, v{DUMMY}, s[{sDBG}:{sDBG+1}] sc1", tag="POLL")
    return I(f"buffer_load_dword v{POLLV}, v{POLLA}, {srd(sMG)}, 0 offen offset:{256*half} sc1", tag="POLL")


def spin(half, lbl, back):
    return mk(f"""{lbl}:
s_mov_b32 s3, 0
{lbl}_l:
s_sleep 4""") + [poll_issue(half)] + mk(f"""s_waitcnt vmcnt(0)
v_readfirstlane_b32 s{sT0}, v{POLLV}
s_add_u32 s3, s3, 1
s_cmp_ge_u32 s3, 0x40000
s_cbranch_scc1 {back}
s_cmp_ge_u32 s{sT0}, 16
s_cbranch_scc0 {lbl}_l
s_branch {back}""")


def pack_inplace(qt, u):
    b = O(qt, 2 * u)
    r = RC(qt)
    sel = "op_sel_hi:[1,0]" if r % 2 == 0 else "op_sel:[0,1] op_sel_hi:[1,1]"
    o = [f"v_pk_mul_f32 v[{b+2*i}:{b+2*i+1}], v[{b+2*i}:{b+2*i+1}], v[{r & ~1}:{(r & ~1) + 1}] {sel}" for i in range(4)]
    o += [f"v_cvt_pk_bf16_f32 v{b+i}, v{b+2*i}, v{b+2*i+1}" for i in range(4)]
    return o


def final(s):
    Z = Seq()
    offs = []
    for b in range(4):
        offs.append(Z.base())
        Z.mf += pv_list(s, b, False)
    offs.append(Z.base())
    g = 1
    for x in [f"s_add_u32 s{sOOFF}, s{sOOFF}, {120*4096}"] + o_offsets() + [f"s_mov_b32 s{sO+2}, {OWS_BRANCH}", f"s_mov_b32 s{sD}, s{sOUTP}", f"s_mov_b32 s{sD+1}, s{sOUTP+1}",
              f"s_mov_b32 s{sD+2}, {1920*2048}", f"s_mov_b32 s{sD+3}, 0x20000", f"s_mov_b32 s{sREQ}, 0", f"s_mov_b32 s{sCNT}, 0"]:
        Z.put(g, x); g += 1
    G = mkgaps(Z)

    def sm(q):
        r = []
        for e in range(8):
            r.append(sm_exp(q, e))
            if e >= 1 and q not in MSUM: r.append(sm_add(q, e - 1))
            if e >= 2 and e % 2 == 0: r.append(sm_cvt(q, e // 2 - 1))
        r += ([sm_add(q, 7)] if q not in MSUM else []) + [sm_cvt(q, 3)]
        return r
    spread(G, [sm_add(0, 6), sm_add(0, 7)] + sm(1), offs[0], offs[1] - 1)
    spread(G, sm(2), offs[1], offs[2] - 1)
    spread(G, sm(3), offs[2], offs[3] - 1)
    spread(G, lfin(0)[:-1] + lflag() + lfin(1) + lflag() + lfin(2)[:-1] + lflag(), offs[3], offs[4] - 1)
    pre = mk(f"v_lshl_add_u32 v{POLLA}, v0, 22, s{sCTR}") + [I("s_waitcnt lgkmcnt(0)"), poll_issue(0)]
    out = pre + G.emit()
    out += mk(f"""v_lshlrev_b32 v{BV(0)}, 4, v0
v_add_u32 v{BV(1)}, s{sSPIN}, v{BV(0)}
v_lshrrev_b32 v4, 2, v0
v_and_b32 v5, 3, v0
v_bfe_u32 v6, v0, 3, 2
v_lshlrev_b32 v4, 7, v4
v_lshl_add_u32 v4, v6, 5, v4
v_lshl_add_u32 v4, v5, 3, v4
v_add_u32 v{AA2(0)}, {W2BASE}, v4
v_xor_b32 v{AA2(1)}, 32, v{AA2(0)}
v_xor_b32 v{AA2(2)}, 64, v{AA2(0)}
v_xor_b32 v{AA2(3)}, 0x60, v{AA2(0)}""")
    out += mk(lfin(3) + lflag())
    out += mk(f"""s_lshl_b32 s{sT0}, s{sWAVE}, 2
s_add_u32 s{sT0}, s{sT0}, {FLAG1}
v_mov_b32 v8, s{sBAD}
v_mov_b32 v9, s{sT0}
v_mov_b32 v10, {FLAG1}
ds_write_b32 v9, v8""")
    out += [WAIT(vm=["POLL"])] + mk(f"""v_readfirstlane_b32 s{sT0}, v{POLLV}
s_cmp_ge_u32 s{sT0}, s{sNEED}
s_cbranch_scc0 L_spin0""")
    part1 = autonop(out)
    out = mk(f"L_spin0b:\ns_waitcnt lgkmcnt(0)\ns_barrier\nds_read_b128 v[4:7], v10\nv_mov_b32 v{POLLA}, {BIG}")
    pk = [x for q in range(4) for u in range(4) for x in pack_inplace(q, u)]
    n = 0
    for st in range(3):
        out += mk([f"s_mov_b32 s{sSTG}, {st}"] + head_of(sSTG, "ow" if st == 2 else "o"))
        if st == 2:
            out += w2_dma(2)[:1]
        for l in b_loads(st) + (w2_dma(2)[1:] if st == 2 else []):
            out += [l] + mk(pk[n:n + 4]); n += 4
    out += mk(pk[n:])
    out += mk(f"""v_and_b32 v8, 15, v0
v_bfe_u32 v9, v0, 5, 1
v_bfe_u32 v11, v0, 4, 1
v_lshl_or_b32 v9, v11, 1, v9
v_lshlrev_b32 v9, 4, v9
v_lshl_add_u32 v{OUTV}, v8, 11, v9""")
    out += mk([f"s_mov_b32 s{sSTG}, 3"] + head_of(sSTG, "ow"))
    out += badcheck("L_oproj") + mk("s_branch L_restart")
    return part1, autonop(out)


def rd_a2(st, ks, n, sec):
    return I(f"ds_read_b64_tr_b16 {rr('v', AF2(ks & 1, n) + 2*sec, 2)}, v{AA2(n)} offset:{W2SLOT[st % 4]*16384 + ks*4096 + sec*2048}", rd=(("W2", st % 4), f"T{st}"))


def stage2(st, loop=False):
    out = [WAIT(vm=[f"T{st}"])]
    if loop and st % 4 == 1:
        out += mk(f"v_readfirstlane_b32 s{sT0}, v{POLLV}\ns_nop 1\ns_cmp_ge_u32 s{sT0}, s{sREQ}\ns_cbranch_scc0 L_spin1")
        head, out = out, mk("L_spin1b:")
    else:
        head = []
    out.append(I("s_barrier"))
    ld = None
    if st + 3 < 32:
        w = w2_dma(st + 3)
        out.append(w[0])
        ld = w[1:] + b_loads(st + 3)
    out += [rd_a2(st, 0, n, sec) for n in range(4) for sec in range(2)]
    if loop and st % 4 == 2:
        out.append(poll_issue(1))
    if ld is not None:
        out += ld[:2]; ld = ld[2:]
    mf = []
    for ks in range(4):
        for n in range(4):
            for qi in range(2):
                a = rr("v", ACC2(qi, n))
                mf.append(f"{MF} {a}, {rr('v', AF2(ks & 1, n))}, {rr('a', BF(st, ks, qi))}, {'0' if st == 0 and ks == 0 else a}")
    G = Gaps(mf)
    out.append(WAIT(lgkm="auto"))
    for ks in range(4):
        if ks < 3:
            for n in range(4):
                for sec in range(2):
                    G.put(8 * ks + 2 * n + sec, rd_a2(st, ks + 1, n, sec))
            G.put(8 * ks + 7, WAIT(lgkm="auto"))
        G.put(8 * ks + 3, WAIT(lgkm="auto"))
    if ld is not None:
        for i, l in enumerate(ld):
            G.put(1 + 3 * i, l)
        adv = [f"s_add_u32 s{sSTG}, s{sSTG}, 1"] + head_of(sSTG, "ow")
        for i, p in enumerate(adv):
            G.put((20 + i) if i < 6 else 29 + (i - 6) // 2, p)
    if st < 4:
        for u in range(4):
            G.put(2 + 8 * u, st_o(rr("v", O(st, 2 * u)), st, u))
    if OPT.get("diag2"):
        out.insert(2, I("s_memtime s[86:87]"))
        G.put(30, "v_mov_b32 v13, s86"); G.put(31, "ds_write_b32 v12, v13"); G.put(31, "v_add_u32 v12, 4, v12")
    out += G.emit()
    if loop and st % 4 == 3:
        out += mk(f"""s_add_u32 s{sCNT}, s{sCNT}, 1
s_cmp_eq_u32 s{sCNT}, 2
s_cselect_b32 s{sREQ}, s{sNEED}, 0
s_cmp_eq_u32 s{sCNT}, 1
s_cbranch_scc1 L_signal1""")
    return head, out


def out_store():
    o = ["s_nop 7"]
    for qi in range(2):
        for p in range(2):
            b0, b1 = ACC2(qi, 2 * p), ACC2(qi, 2 * p + 1)
            t = 64 + (qi * 2 + p) * 4
            o += [f"v_cvt_pk_bf16_f32 v{t}, v{b0}, v{b0+1}", f"v_cvt_pk_bf16_f32 v{t+2}, v{b1}, v{b1+1}",
                  f"v_cvt_pk_bf16_f32 v{t+1}, v{b0+2}, v{b0+3}", f"v_cvt_pk_bf16_f32 v{t+3}, v{b1+2}, v{b1+3}",
                  f"v_permlane16_swap_b32 v{t}, v{t+2}", f"v_permlane16_swap_b32 v{t+1}, v{t+3}",
                  f"buffer_store_dwordx4 {rr('v', t)}, v{OUTV}, {srd(sD)}, s{sDOFF1 if qi else sDOFF} offen offset:{p*64}"]
    return autonop(mk(o))


def kaddr():
    return f"""v_and_b32 v5, 15, v0
v_bfe_u32 v6, v0, 5, 1
v_bfe_u32 v7, v0, 4, 1
v_lshl_or_b32 v6, v7, 1, v6
v_xor_b32 v6, v6, v5
v_lshlrev_b32 v6, 4, v6
v_lshl_add_u32 v{KA(0)}, v5, 8, v6
v_xor_b32 v{KA(1)}, 64, v{KA(0)}
v_xor_b32 v{KA(2)}, 0x80, v{KA(0)}
v_xor_b32 v{KA(3)}, 0xc0, v{KA(0)}
v_lshrrev_b32 v5, 2, v0
v_and_b32 v6, 7, v5
v_lshlrev_b32 v5, 8, v5
v_lshl_add_u32 v5, v6, 5, v5
v_and_b32 v6, 3, v0
v_lshl_add_u32 v5, v6, 3, v5
v_add_u32 v5, {VBASE}, v5""".split("\n")


def vaddr():
    return [f"v_xor_b32 v{VA(t)}, {t<<5}, v5" for t in range(8)]


def consts():
    o = [f"v_and_b32 v6, 3, v0", "v_cmp_eq_u32 vcc, 0, v6", "v_mov_b32 v7, 0x3f803f80", f"v_mov_b32 v{LV[0]}, 0", f"v_mov_b32 v{LV[2]}, 0"]
    o += [f"v_cndmask_b32 v{ONES+i}, 0, v7, vcc" for i in range(4)]
    for hh in range(2):
        o += [f"v_mov_b32 v{MG(hh,q)}, 0xff800000" for q in range(3)] + [f"v_mov_b32 v{MG(hh,3)}, s{sT2}"]
    return o


def tail_region(dq):
    Z = Seq()
    for kk in (8, 9, 10):
        add_step(Z, kk, dq=dq)
    b11 = add_step(Z, 11, dq=dq, second=False, vmneed=["S12", "S13", "S14"])
    assert not dq
    blk = {}

    def add_block(p):
        blk[p] = Z.base()
        if p < 7:
            order = [(ti, qt, ks) for qt in range(4) for ti in range(2) for ks in range(4)]
        else:
            order = [(ti, qt, ks) for h in range(2) for qt in range(4) for ti in range(2) for ks in (2 * h, 2 * h + 1)]
        for ti, qt, ks in order:
            k, a = ACC(2 * p + ti, qt)
            Z.mf.append(f"{MF} {rr(k, a)}, {rr('a', PF(p, ti, ks))}, {rr('a', XP(ks, qt))}, {rr(k, a)}")
    for p in range(6):
        add_block(p)
    qk0 = Z.base()
    for qt in range(4):
        Z.mf += qk_chain(0, qt, 0, True, 0, K0F) + qk_chain(0, qt, 1, True, 0, K0F)
    add_block(6); add_block(7)
    E = add_epoch(Z, 0, pv_zero=True)
    ra = lambda p, ti, ks, sec: rd_a(12 + ks, 2 * p + ti, sec, dst=PF(p, ti, ks), off=ks * 16384)
    rx = lambda ks, qt: rd_x(12 + ks, qt, dst=XP(ks, qt), off=ks * 16384)
    g = b11 + 32
    for ks in range(3):
        for ti in range(2):
            Z.put(g, ra(0, ti, ks, 0)); Z.put(g + 1, ra(0, ti, ks, 1)); g += 2
    for qt in range(2):
        for ks in range(3):
            Z.put(g, rx(ks, qt)); g += 1
    assert g == b11 + 50
    Z.put(b11 + 50, WAIT(vm=["S15"])); Z.put(b11 + 51, "s_barrier")
    g = b11 + 52
    for x in [rx(3, 0), ra(0, 0, 3, 0), ra(0, 0, 3, 1), ra(0, 1, 3, 0), ra(0, 1, 3, 1), rx(3, 1)] + [rx(ks, qt) for qt in (2, 3) for ks in range(4)]:
        Z.put(g, x); g += 1
    Z.put(b11 + 63, WAIT(lgkm="auto"))
    Z.put(blk[0] + 7, WAIT(lgkm="auto"))
    nxt = {0: 1, 1: 2, 2: 3, 3: 4, 4: 5, 5: 6, 6: 7}
    for p, n in nxt.items():
        g0 = blk[p] + (3 if p == 0 else 1)
        rs = [ra(n, ti, ks, sec) for ti in range(2) for ks in range(4) for sec in range(2)]
        if p == 5:
            g0 = qk0 + 1
        slots = [g0 + (i * 3) // 2 for i in range(16)]
        for gg, x in zip(slots, rs):
            Z.put(gg, x)
        Z.put((blk[n] - 1), WAIT(lgkm="auto"))
    Z.put(blk[0] + 12, WAIT(lgkm=6)); Z.put(blk[0] + 13, "s_barrier")
    Z.put(blk[5] + 0, WAIT(vm=["K0"])); Z.put(blk[5] + 1, "s_barrier")
    for i, (kt, j) in enumerate([(kt, j) for kt in range(2) for j in range(4)]):
        Z.put(blk[5] + 3 + 3 * i, rd_k(0, kt, j, dst=rr("v", K0F(kt, j))))
    Z.put(qk0 - 1, WAIT(lgkm="auto"))
    Z.put(blk[6] + 29, WAIT(lgkm=0, vm=["K1", "V0", "K2", "V1"])); Z.put(blk[6] + 30, "s_barrier")
    for i, (kt, j) in enumerate([(kt, j) for kt in range(2) for j in range(4)]):
        Z.put(blk[7] + 2 * i, rd_k(1, kt, j))
    for i, (t, sec) in enumerate([(t, sec) for t in range(8) for sec in range(2)]):
        Z.put(blk[7] + 16 + i, rd_v(0, t, sec))
    Z.put(blk[7] + 31, WAIT(lgkm="auto"))
    def kv(grp, g0, g1):
        Z.put(g0 - 1, ("late", [grp[0]])); Z.put(g0, grp[1]); Z.put(g1, grp[2]); Z.put(g1, ("late", grp[3:]))
    D = int(OPT.get('dist', R))
    if D == 8:
        kv(dma_k(0), blk[0] + 5, blk[0] + 8)
        kv(dma_k(1), blk[0] + 28, blk[0] + 30)
        plan = [(1, dma_v(0), dma_k(2)), (2, dma_v(1), dma_k(3)), (3, dma_v(2), None), (4, dma_k(4), None), (5, dma_v(3), None)]
        for p, g1, g2 in plan:
            if p == 5:
                kv(g1, blk[p] + 4, blk[p] + 16)
            elif g2 is None:
                kv(g1, blk[p] + 9, blk[p] + 27)
            else:
                kv(g1, blk[p] + 3, blk[p] + 9); kv(g2, blk[p] + 21, blk[p] + 28)
        kv(dma_k(5), qk0 + 9, qk0 + 27)
        kv(dma_k(6), blk[6] + 9, blk[6] + 21)
        kv(dma_v(4), blk[7] + 1, blk[7] + 5)
        kv(dma_k(7), blk[7] + 9, blk[7] + 13)
        kv(dma_v(5), E[0] + 2, E[0] + 4)
        kv(dma_v(6), E[1] + 3, E[1] + 11)
    else:
        seqs = [dma_k(0)]
        for t in range(1, D):
            seqs += [dma_k(t), dma_v(t - 1)]
        one = [(blk[0] + 5, blk[0] + 28)] + [(blk[p] + 9, blk[p] + 27) for p in (1, 2, 3, 4)] + [(blk[5] + 4, blk[5] + 16), (qk0 + 9, qk0 + 27),
               (blk[6] + 9, blk[6] + 21), (blk[7] + 1, blk[7] + 9)]
        two = {7: [(blk[6] + 3, blk[6] + 9), (blk[6] + 15, blk[6] + 21)], 8: [(blk[7] + 1, blk[7] + 5), (blk[7] + 9, blk[7] + 13)],
               6: [(qk0 + 3, qk0 + 9), (qk0 + 21, qk0 + 27)], 5: [(blk[5] + 4, blk[5] + 10), (blk[5] + 16, blk[5] + 26)]}
        extra = len(seqs) - len(one)
        dbl = [8, 7, 6, 5][:max(0, extra)]
        slots = []
        for i, pr in enumerate(one):
            slots += two[i] if i in dbl else [pr]
        if D == 7:
            seqs = [x for x in seqs if x[1].kw["tag"] not in ("V4", "V5")] + [dma_v(4), dma_v(5)]
        slots = slots[len(slots) - len(seqs):] if OPT.get("late") else slots
        for grp, (g0, g1) in zip(seqs, slots):
            kv(grp, g0, g1)
    Z.put(blk[4] + 0, f"s_cmp_eq_u32 s{sWAVE}, 3"); Z.put(blk[4] + 1, f"s_mov_b32 s{sT2}, 0xff800000")
    Z.put(blk[4] + 2, f"s_cselect_b32 s{sT2}, 0x43480000, s{sT2}")
    Z.put(blk[4] + 3, f"s_mov_b32 s{sCNT}, 0")
    if OPT.get("ts"):
        Z.put(blk[0], f"s_memtime s[{sTS+4}:{sTS+5}]"); Z.put(E[0] + 6, f"s_memtime s[{sTS+6}:{sTS+7}]")
    G = mkgaps(Z)
    spread(G, kaddr(), b11 + 32, b11 + 62)
    nb = {0: blk[1], 1: blk[2], 2: blk[3], 3: blk[4], 4: blk[5], 5: qk0, 6: blk[7]}
    for p in range(7):
        for qt in range(4):
            g0 = blk[p] + 8 * qt + 10
            extra = []
            if p == 5 and qt == 0:
                extra = consts()
            spread(G, conv_unit(p, qt) + extra, g0, g0 + 7)
    hook = blk[5] + 18
    spread(G, maxops(0, 0), qk0 + 10, qk0 + 19)
    spread(G, maxops(0, 1), qk0 + 20, qk0 + 29)
    spread(G, maxops(0, 2), qk0 + 30, blk[6] + 9)
    spread(G, maxops(0, 3), blk[6] + 10, blk[6] + 25)
    spread(G, vaddr(), blk[6] + 26, blk[7] + 8)
    sm0 = []
    for e in range(8):
        sm0.append(sm_exp(0, e))
        if 1 <= e <= 6: sm0.append(sm_add(0, e - 1))
        if e >= 2 and e % 2 == 0: sm0.append(sm_cvt(0, e // 2 - 1))
    sm0.append(sm_cvt(0, 3))
    spread(G, sm0, blk[7] + 6, blk[7] + 30)
    spread(G, conv_unit(7, 0) + conv_unit(7, 1) + conv_unit(7, 2) + conv_unit(7, 3), blk[7] + 31 + 5, E[3] + 1)
    if OPT.get("diag"):
        G.va[blk[7]] += mk(f"s_lshl_b32 s3, s{sWAVE}, 10\ns_add_u32 s3, s3, {FLAG + 4096}\nv_mov_b32 v16, s3")
    G.va[hook] += mk(f"s_cmp_lt_u32 s{sINI}, {BIG}\ns_cbranch_scc1 L_announce\nL_annback:\ns_cmp_eq_u32 s{sMODE}, 2\ns_cbranch_scc1 L_mgload\nL_mgback:")
    out = autonop(G.emit())
    out += mk(f"s_cmp_eq_u32 s{sMODE}, 1\ns_cbranch_scc1 L_maxpass")
    est = sum(16 + G.cost(g) for g in range(blk[0], E[4]))
    print("tail est cycles blk0..ep0 end:", est, "mfma", E[4] - blk[0])
    i = [n for n, x in enumerate(out) if x.text == "L_mgback:"][0]
    return out[:i], out[i:]


def build(opts):
    OPT.clear(); OPT.update(opts)
    for k in POL:
        if k in opts: POL[k] = opts[k].replace("+", " ").replace("-", "")
    ts = opts.get("ts", False)
    L = int(opts.get("la", 3))
    pg = Prog()
    T = "main"

    def stamp(i):
        return mk(f"s_memtime s[{sTS+2*i}:{sTS+2*i+1}]") if ts else []
    entry = f"""
s_cmp_ge_u32 s2, 256
s_cbranch_scc1 L_end
{"s_memtime s[66:67]" if ts else ""}
{"s_memrealtime s[68:69]" if ts else ""}
v_lshrrev_b32 v1, 6, v0
v_and_b32 v0, 63, v0
v_readfirstlane_b32 s{sWAVE}, v1
s_mov_b32 s{sMODE}, 0
s_mov_b32 s{sSIG}, 0
L_start:
"""
    init = f"""
s_bfe_u32 s{sT0}, s2, 0x10002             ; branch
s_mul_i32 s3, s{sT0}, 40
s_add_u32 s{sARG}, s0, s3
s_addc_u32 s{sARG+1}, s1, 0
s_load_dwordx8 s[56:63], s[{sARG}:{sARG+1}], 0     ; x, K, V, wq
s_load_dwordx2 s[64:65], s[0:1], 96                ; ws
s_load_dwordx2 s[34:35], s[{sARG}:{sARG+1}], 32    ; wo
s_load_dwordx2 s[{sOUTP}:{sOUTP+1}], s[0:1], 80
s_load_dwordx2 s[{sDBG}:{sDBG+1}], s[0:1], 88
s_and_b32 s{sT1}, s2, 3
s_lshl_b32 s{sT1}, s{sT1}, 2
s_bfe_u32 s{sT2}, s2, 0x20003
s_add_u32 s{sT1}, s{sT1}, s{sT2}
s_lshr_b32 s{sT2}, s2, 5                  ; batch
v_lshrrev_b32 v1, 2, v0
v_and_b32 v2, 3, v0
v_lshrrev_b32 v3, 4, v0
v_lshlrev_b32 v4, 1, v3
v_and_b32 v4, 2, v4
v_lshrrev_b32 v5, 1, v3
v_mul_u32_u24 v5, 3, v5
v_xor_b32 v4, v4, v5
v_xor_b32 v4, v4, v2
v_lshlrev_b32 v4, 4, v4
v_lshl_add_u32 v4, v1, 10, v4
s_lshl_b32 s3, s{sWAVE}, 16
v_add_u32 v{XV(0)}, s3, v4
v_add_u32 v{XV(1)}, {15360}, v{XV(0)}
v_add_u32 v{XV(2)}, {2*15360}, v{XV(0)}
v_add_u32 v{XV(3)}, {3*15360}, v{XV(0)}
v_lshrrev_b32 v4, 5, v0
v_and_b32 v5, 31, v0
s_and_b32 s3, s{sWAVE}, 1
s_lshl_b32 s3, s3, 3
v_lshl_or_b32 v6, v4, 1, s3
v_xor_b32 v5, v5, v6
v_lshlrev_b32 v5, 4, v5
v_lshl_add_u32 v5, v4, 13, v5
s_lshl_b32 s3, s{sWAVE}, 16
v_add_u32 v{WV(0)}, s3, v5
v_xor_b32 v6, 64, v{WV(0)}
v_add_u32 v{WV(1)}, {15360}, v6
v_add_u32 v{WV(2)}, {2*15360}, v{WV(0)}
v_add_u32 v{WV(3)}, {3*15360}, v6
s_lshl_b32 s{sKVL}, s{sWAVE}, 11
s_lshl_b32 s{sSTL}, s{sWAVE}, 12
s_mov_b32 s{sXOFF}, 0
s_lshl_b32 s{sWOFF}, s{sT1}, 9
s_and_b32 s3, s{sT2}, {int(opts.get("rot1", 3))}
s_lshl_b32 s{sROTX}, s3, 7
s_lshl_b32 s{sROTW}, s3, 19
s_mov_b32 s{sXX}, s{sROTX}
s_xor_b32 s{sWX}, s{sWOFF}, s{sROTW}
s_mul_i32 s3, s{sT2}, 245760
s_waitcnt lgkmcnt(0)
s_add_u32 s{sX}, s56, s3
s_addc_u32 s{sX+1}, s57, 0
s_mov_b32 s{sX+2}, 245760
s_mov_b32 s{sX+3}, 0x20000
s_mov_b32 s{sW}, s62
s_mov_b32 s{sW+1}, s63
s_mov_b32 s{sW+2}, 0x400000
s_mov_b32 s{sW+3}, 0x20000
"""

    def issue(items):
        r = []
        for pre, d, post in items:
            r += pre + ([I("s_nop 0")] if pre else []) + [d] + post
        return r
    seq = mk(init) + stamp(0) + issue(stage_items(0))
    rest = f"""
s_lshl_b32 s3, s{sT2}, 4
s_add_u32 s3, s3, s{sT1}
s_lshl_b32 s3, s3, 19
{"s_and_b32 s3, s3, 0x180000" if opts.get("kvl2") else ""}
s_add_u32 s{sK}, s58, s3
s_addc_u32 s{sK+1}, s59, 0
s_mov_b32 s{sK+2}, 0x80000
s_mov_b32 s{sK+3}, 0x20000
s_add_u32 s{sV}, s60, s3
s_addc_u32 s{sV+1}, s61, 0
s_mov_b32 s{sV+2}, 0x80000
s_mov_b32 s{sV+3}, 0x20000
s_mul_i32 s3, s{sT0}, {OWS_BRANCH}
s_add_u32 s{sO}, s64, s3
s_addc_u32 s{sO+1}, s65, 0
s_and_b32 s3, s{sSIG}, 1
s_cselect_b32 s{sO+2}, 0, {OWS_BRANCH}
s_mov_b32 s{sO+3}, 0x20000
s_mov_b32 s{sPF}, s34
s_mov_b32 s{sPF+1}, s35
s_mov_b32 s{sPF+2}, 0x400000
s_mov_b32 s{sPF+3}, 0x20000
s_add_u32 s{sMG}, s64, {MGWS}
s_addc_u32 s{sMG+1}, s65, 0
s_mov_b32 s{sMG+2}, 0x400000
s_mov_b32 s{sMG+3}, 0x20000
s_mul_i32 s3, s{sT2}, 15
s_lshl_b32 s{sT3}, s{sWAVE}, 2
s_add_u32 s3, s3, s{sT3}
s_lshl_b32 s3, s3, 12
s_mul_i32 s{sT3}, s{sT1}, {2*120*4096}
s_add_u32 s{sOOFF}, s3, s{sT3}
s_mov_b32 s{sKOFF}, s{sKVL}
s_mov_b32 s{sVOFF}, s{sKVL}
s_lshr_b32 s3, s2, 3
s_lshl_b32 s{sROT}, s2, 2
s_xor_b32 s3, s3, s{sROT}
s_and_b32 s3, s3, {31 if not opts.get("norot") else 0}
s_lshl_b32 s{sROT}, s3, 13
s_xor_b32 s{sKX}, s{sKOFF}, s{sROT}
s_xor_b32 s{sVX}, s{sVOFF}, s{sROT}
s_mov_b32 s{sC}, {f2u(QSCALE):#x}
s_mov_b32 s{sBAD}, 0
s_mov_b32 s{sTH}, {f2u(LTHRESH):#x}
s_mov_b32 s{sCNT}, 0
s_mov_b32 s{sRD}, {idx(0)*16384}
s_add_u32 s{sDMA}, s{sSTL}, {idx(L-1)*16384}
s_and_b32 s3, s2, 3
s_lshr_b32 s{sT3}, s2, 3
s_lshl_b32 s3, s3, 5
s_add_u32 s3, s3, s{sT3}
s_lshl_b32 s3, s3, 15
s_lshl_b32 s{sT3}, s{sWAVE}, 13
s_add_u32 s3, s3, s{sT3}
v_lshl_add_u32 v{PFV}, v0, 7, s3
s_lshl_b32 s3, s{sT0}, 3
s_add_u32 s{sOWN}, s3, s{sT2}
s_lshl_b32 s{sOWN}, s{sOWN}, 9
s_add_u32 s{sOWN}, s{sOWN}, {FLW}
s_cmp_eq_u32 s{sWAVE}, 0
s_cselect_b32 s{sOWN}, s{sOWN}, {BIG}
s_and_b32 s{sT3}, s{sSIG}, 4
s_or_b32 s{sT3}, s{sT3}, s{sT1}
s_cselect_b32 s{sINI}, {BIG}, s{sOWN}
s_or_b32 s{sSIG}, s{sSIG}, 4
s_and_b32 s{sT1}, s2, 3
s_lshl_b32 s{sT1}, s{sT1}, 1
s_lshr_b32 s{sT3}, s2, 7
s_add_u32 s{sT1}, s{sT1}, s{sT3}
s_add_u32 s{sCTR}, s3, s{sT1}
s_lshl_b32 s{sCTR}, s{sCTR}, 9
s_add_u32 s{sCTR}, s{sCTR}, {FLW}
s_cmp_eq_u32 s{sWAVE}, 0
s_cselect_b32 s{sCTR}, s{sCTR}, {BIG}
s_cselect_b32 s{sNEED}, 16, 0
s_bfe_u32 s{sT2}, s2, 0x10006             ; m half
s_bfe_u32 s{sT3}, s2, 0x30003             ; n tile
s_mul_i32 s{sT1}, s{sT1}, 15
s_lshl_b32 s3, s{sT2}, 3
s_add_u32 s{sT1}, s{sT1}, s3
s_lshl_b32 s3, s{sWAVE}, 1
s_add_u32 s{sT1}, s{sT1}, s3
s_lshl_b32 s{sOB}, s{sT1}, 12
s_lshl_b32 s{sWB}, s{sWAVE}, 15
s_lshl_b32 s3, s{sT3}, 7
s_add_u32 s{sWB}, s{sWB}, s3
s_lshl_b32 s{sDOFF}, s{sT1}, 15
s_add_u32 s{sDOFF}, s{sDOFF}, s3
s_lshl_b32 s3, s{sT0}, 10
s_add_u32 s{sDOFF}, s{sDOFF}, s3
s_add_u32 s{sDOFF1}, s{sDOFF}, 32768
s_lshr_b32 s3, s2, 6
s_lshl_b32 s3, s3, 1
s_add_u32 s3, s3, s{sT3}
s_and_b32 s{sMASK}, s3, {int(opts.get("stag", 3))}
s_lshl_b32 s3, s{sT2}, 2
s_add_u32 s3, s3, s{sWAVE}
s_cmp_eq_u32 s3, 7
s_cselect_b32 s{sDOFF1}, 0x40000000, s{sDOFF1}
s_mov_b32 s{sSPIN}, 4096
s_cselect_b32 s{sSPIN}, 0x40000000, s{sSPIN}
v_lshlrev_b32 v{OVOFF}, 4, v0
v_and_b32 v1, 15, v0
v_lshrrev_b32 v2, 4, v0
s_lshl_b32 s3, s{sWAVE}, 3
s_and_b32 s3, s3, 15
v_add_u32 v3, s3, v2
v_xor_b32 v4, v1, v3
v_lshlrev_b32 v4, 4, v4
v_lshl_add_u32 v{KV0}, v2, 8, v4
v_xor_b32 v{KV1}, 64, v{KV0}
v_lshlrev_b32 v3, 1, v2
v_xor_b32 v4, v1, v3
v_lshlrev_b32 v4, 4, v4
v_lshl_add_u32 v{VV0}, v2, 8, v4
v_xor_b32 v{VV1}, 0x80, v{VV0}
v_lshrrev_b32 v3, 2, v1
v_lshlrev_b32 v4, 1, v3
v_and_b32 v4, 2, v4
v_lshrrev_b32 v5, 1, v3
v_mul_u32_u24 v5, 3, v5
v_xor_b32 v4, v4, v5
v_xor_b32 v4, v4, v2
v_lshlrev_b32 v4, 4, v4
v_lshl_add_u32 v4, v1, 6, v4
s_add_u32 s3, s{sSTL}, {idx(0)*16384}
v_add_u32 v{XA}, s3, v4
v_bfe_u32 v3, v0, 2, 2
v_and_b32 v4, 3, v0
v_and_b32 v5, 1, v2
v_lshl_or_b32 v5, v5, 2, v3
v_lshl_add_u32 v6, v2, 3, v3
v_lshlrev_b32 v6, 9, v6
v_lshl_add_u32 v6, v5, 5, v6
v_lshl_add_u32 v6, v4, 3, v6
v_add_u32 v{AA(0)}, {WOFFL + idx(0)*16384}, v6
"""
    seq += mk(rest)
    seq += mk([f"v_xor_b32 v{AA(u)}, {u<<5}, v{AA(0)}" for u in range(1, 8)])
    if not opts.get("nopfcode"):
        seq += mk(f"""s_getpc_b64 s[88:89]
L_pc:
s_sub_u32 s88, s88, L_pc-{KNAME}
s_subb_u32 s89, s89, 0
s_lshl_b32 s3, s{sWAVE}, 13
v_lshl_add_u32 v1, v0, 7, s3
v_min_u32 v1, L_codeend-{KNAME}-4, v1
v_add_u32 v2, 0x8000, v1
v_min_u32 v2, L_codeend-{KNAME}-4, v2""")
        seq += [I(f"global_load_dword v{DUMMY}, v1, s[88:89]", tag="PFC"), I(f"global_load_dword v3, v2, s[88:89]", tag="PFC")]
    seq += mk(f"v_lshl_add_u32 v4, v0, 22, s{sINI}\nv_mov_b32 v5, 0")
    seq += [I(f"buffer_store_dword v5, v4, {srd(sMG)}, 0 offen sc1", tag="INI"), I(f"buffer_store_dword v5, v4, {srd(sMG)}, 0 offen offset:256 sc1", tag="INI")]
    seq += mk([f"v_mov_b32 v{i}, 0" for i in range(32, 256)])
    seq += mk([f"v_accvgpr_write_b32 a{i}, 0" for i in range(224, 256)])
    for st in range(1, L - 1):
        seq += issue(stage_items(st))
    if OPT.get("diag1"):
        seq += mk(f"""s_add_u32 s88, s64, {1<<27}
s_addc_u32 s89, s65, 0
s_mov_b32 s90, 0x100000
s_mov_b32 s91, 0x20000
s_lshl_b32 s3, s2, 10
s_lshl_b32 s{sT0}, s{sWAVE}, 8
s_add_u32 s3, s3, s{sT0}
s_add_u32 s3, s3, 0xc0000
v_mov_b32 v1, s3""")
    seq += [WAIT(vm=["S0"]), I("s_barrier")]
    seq += [rd_x(0, m) for m in range(4)]
    for T_ in range(8):
        seq += [rd_a(0, T_, 0), rd_a(0, T_, 1)]
    seq += issue(stage_items(L - 1)[:5])
    seq += stamp(1) + [WAIT(lgkm=0 if ts else "auto")]

    def front(tr, upto_ep0=True, mgload=False):
        pg.visit(tr, "init", autonop(copy_seq(seq)))
        pg.visit(tr, "lbl_p1", mk(".p2align 3\nL_p1loop:"))
        for kk in range(8):
            Z = Seq()
            add_step(Z, kk, L=L, loop_end=(4 if kk & 1 else None))
            o = mkgaps(Z).emit()
            if kk & 1:
                o += mk("s_cbranch_scc1 L_p1loop")
            pg.visit(tr, f"p1_{kk & 1}", o)
        dq = [(0, it) for it in stage_items(7 + L)[5:]]
        for st in range(8 + L, 16):
            dq += [(st - 5, it) for it in stage_items(st)]
        t1, t2 = tail_region(dq)
        pg.visit(tr, "tail1", t1)
        if mgload:
            pg.visit(tr, "mgload", mgload_seg())
        pg.visit(tr, "tail2", t2)

    def copy_seq(sq):
        return [I(x.text, **x.kw) for x in sq]

    def loop(tr, s0):
        pg.visit(tr, "lbl_loop", mk(".p2align 3\nL_loop:"))
        for s in range(1, 31):
            ph = s % 8
            ctl = {6: "exit", 0: 8}.get(ph, ph)
            pg.visit(tr, f"ep_{ph}", epoch(s0 + s, ctl=ctl))
            if isinstance(ctl, int):
                g = s0 + s
                if g >= 55:
                    pg.visit(tr, f"late_{ctl}", late_block(ctl, g))
                else:
                    pg.visit(tr, f"nl_{ctl}", [WAIT(vm=[f"K{g+3}", f"V{g+2}"]), I("s_barrier")])
                pg.visit(tr, f"lb_{ctl}", mk(f"L_lateback{ctl}:" + ("\ns_branch L_loop" if ctl == 8 else "")))
        pg.visit(tr, "exit", mk(f"L_exit:\ns_cmp_eq_u32 s{sCNT}, 8\ns_cbranch_scc1 L_final"))

    def body(tr, spins=False):
        loop(tr, 0)
        pg.visit(tr, "boundary", boundary(31))
        loop(tr, 32)
        f1, f2 = final(63)
        pg.visit(tr, "final1", mk("L_final:") + (mk(f"s_memtime s[{sTS+8}:{sTS+9}]") if ts else []) + f1)
        if spins:
            pg.visit(tr, "spin0", spin(0, "L_spin0", "L_spin0b"))
        pg.visit(tr, "final2", f2)
        lbl = mk("L_oproj:")
        if OPT.get("diag2"):
            lbl += mk(f"s_lshl_b32 s3, s{sWAVE}, 8\ns_add_u32 s3, s3, {FLAG1 + 1024}\nv_mov_b32 v12, s3")
        pg.visit(tr, "lbl_o", lbl)
        for st in range(32):
            lp = 4 <= st < 28
            if st == 4:
                pg.visit(tr, "lbl_o2", mk(".p2align 3\nL_oloop:"))
            h, t = stage2(st, loop=lp)
            nm = f"o_{st % 4}" if lp else f"o_p{st}"
            if h:
                pg.visit(tr, nm + "h", h)
                if spins and st == 13:
                    pg.visit(tr, "spin1", spin(1, "L_spin1", "L_spin1b"))
            pg.visit(tr, nm, t)
            if lp and st % 4 == 3:
                if st == 7 and spins:
                    pg.visit(tr, "signal1", mk("L_signal1:") + autonop(signal(1)) + mk(f"v_lshl_add_u32 v{POLLA}, v0, 22, s{sCTR}\ns_branch L_oloop"))
                else:
                    pg.visit(tr, "o_back", mk(f"s_cmp_lt_u32 s{sCNT}, 6\ns_cbranch_scc1 L_oloop"))
        pg.visit(tr, "ostore", out_store() + mk("s_branch L_done"))

    def mgload_seg():
        o = mk(f"L_mgload:\ns_lshl_b32 s3, s2, 13\ns_add_u32 s3, s3, s{sKVL}")
        o += [I(f"buffer_load_dword v{MG(hh,q)}, v{OVOFF}, {srd(sMG)}, s3 offen offset:{hh*1024 + q*4} sc1") for hh in range(2) for q in range(4)]
        o += mk("s_waitcnt vmcnt(0)\ns_branch L_mgback")
        return o

    def maxpass():
        o = mk(f"""L_maxpass:
s_waitcnt vmcnt(0) lgkmcnt(0)
s_barrier
s_mov_b32 s{sKOFF}, s{sKVL}
s_xor_b32 s{sKX}, s{sKOFF}, s{sROT}""")
        for hh in range(2):
            o += mk(f"s_mov_b32 s{sCNT}, 0\nL_maxloop{hh}:")
            d = dma_k(64 + 8 * hh)
            o += [d[0], I("s_nop 0")] + d[1:] + mk("s_waitcnt vmcnt(0)\ns_barrier")
            o += [rd_k(64 + 8 * hh, kt, j) for kt in range(2) for j in range(4)] + mk("s_waitcnt lgkmcnt(0)\ns_barrier")
            for qt in range(4):
                o += mk(qk_chain(0, qt, 0, True, hh) + qk_chain(0, qt, 1, True, hh))
            o += mk("s_nop 7")
            for qt in range(4):
                o += mk([f"v_max3_f32 v{MG(hh,qt)}, v{MG(hh,qt)}, v{S(qt,2*i)}, v{S(qt,2*i+1)}" for i in range(4)])
            o += mk(f"s_add_u32 s{sCNT}, s{sCNT}, 1\ns_cmp_lt_u32 s{sCNT}, 32\ns_cbranch_scc1 L_maxloop{hh}")
        o += mk(f"s_lshl_b32 s3, s2, 13\ns_add_u32 s3, s3, s{sKVL}")
        o += [I(f"buffer_store_dword v{MG(hh,q)}, v{OVOFF}, {srd(sMG)}, s3 offen offset:{hh*1024 + q*4} sc1") for hh in range(2) for q in range(4)]
        o += mk(f"s_mov_b32 s{sMODE}, 2\ns_waitcnt vmcnt(0) lgkmcnt(0)\ns_barrier\ns_branch L_start")
        return o

    pg.visit(T, "entry", autonop(mk(entry)))
    front(T)
    body(T)
    pg.visit(T, "restart", mk(RESTART))
    front(T)
    pg.visit(T, "maxpass", maxpass())
    front(T, mgload=True)
    body(T, spins=True)
    pg.visit("x", "spin2", spin(2, "L_spin2", "L_spin2b"))
    pg.visit("x", "announce", announce())
    end = mk("L_done:")
    if ts:
        end += mk(f"""s_memtime s[{sTS}:{sTS+1}]
s_memrealtime s[{sTS+10}:{sTS+11}]
s_waitcnt lgkmcnt(0)
s_add_u32 s{sK}, s64, {1<<27}
s_addc_u32 s{sK+1}, s65, 0
s_mov_b32 s{sK+2}, 0x100000
s_mov_b32 s{sK+3}, 0x20000
v_mov_b32 v32, s{sTS}
v_mov_b32 v33, s{sTS+2}
v_mov_b32 v34, s{sTS+4}
v_mov_b32 v35, s{sTS+6}
v_mov_b32 v36, s{sTS+8}
v_mov_b32 v37, s{sTS+10}
v_mov_b32 v38, s66
v_mov_b32 v39, s68
s_lshl_b32 s3, s2, 7
s_lshl_b32 s{sT0}, s{sWAVE}, 5
s_add_u32 s3, s3, s{sT0}
v_mov_b32 v40, s3
buffer_store_dwordx4 v[32:35], v40, {srd(sK)}, 0 offen
buffer_store_dwordx4 v[36:39], v40, {srd(sK)}, 0 offen offset:16""")
    if OPT.get("diag"):
        end += mk(f"""s_lshl_b32 s3, s{sWAVE}, 10
s_add_u32 s3, s3, {FLAG + 4096}
v_lshl_add_u32 v40, v0, 3, s3
ds_read_b64 v[42:43], v40
s_lshl_b32 s3, s2, 11
s_lshl_b32 s{sT0}, s{sWAVE}, 9
s_add_u32 s3, s3, s{sT0}
s_add_u32 s3, s3, 0x40000
v_lshl_add_u32 v41, v0, 3, s3
s_waitcnt lgkmcnt(0)
buffer_store_dwordx2 v[42:43], v41, {srd(sK)}, 0 offen""")
    if OPT.get("diag2"):
        end += mk(f"""s_lshl_b32 s3, s{sWAVE}, 8
s_add_u32 s3, s3, {FLAG1 + 1024}
v_lshl_add_u32 v40, v0, 2, s3
ds_read_b32 v42, v40
s_lshl_b32 s3, s2, 10
s_lshl_b32 s{sT0}, s{sWAVE}, 8
s_add_u32 s3, s3, s{sT0}
s_add_u32 s3, s3, 0xc0000
v_lshl_add_u32 v41, v0, 2, s3
s_waitcnt lgkmcnt(0)
buffer_store_dword v42, v41, {srd(sK)}, 0 offen""")
    end += mk("L_end:\ns_endpgm")
    pg.visit("end", "end", end)
    pg.resolve()
    errs = pg.check()
    return pg.text(), errs
```

```python
import sys
sys.path.insert(0, "gen")
from common import *
import k1c
out = sys.argv[1]
opts = {}
for a in sys.argv[2:]:
    k, _, v = a.partition("=")
    opts[k] = v if v else True
t1, errs = k1c.build(opts)
K = NAME + "_kernel"
s = HDR_COMMENT + "; @launch grid=(256,1,1) block=(256,1,1) lds=163840\n"
s += '.amdgcn_target "amdgcn-amd-amdhsa--gfx950"\n.text\n' + kernel_text(K, t1) + "L_codeend:\n" + '.section .rodata,"a"\n' + kd(K, 512, 256)
open(out, "w").write(s)
print("errors:", len(errs))
```

```python
import struct
from asmlib import *

R = 8
KBASE, VBASE = 0, 65536
WOFFL = 81920
FLAG = 131072
OWS_BRANCH = 120 * 128 * 1024
MGWS = 32 << 20
QSCALE = 1.4426950408889634 / (128 ** 0.5)
LTHRESH = float(2 ** 30)
POL = {"x": "", "wq": "nt", "ost": "sc1", "kv": "nt"}
OPT = {}
KNAME = 'concat_heads__mha_block_cached__gqa_block_cached__near_ridge_kernel'
FLW = 2 << 20
BIG = 0x40000000
FLAG1 = 57344


def f2u(f):
    return struct.unpack("<I", struct.pack("<f", f))[0]


sK, sV, sX, sW, sO, sPF, sMG = 4, 8, 12, 16, 20, 92, 96
sWAVE, sKOFF, sVOFF, sXOFF, sWOFF = 24, 25, 26, 27, 28
sKVL, sSTL = 29, 30
sRD, sDMA, sDELTA = 31, 32, 33
sCNT, sUNUSED, sMODE, sOOFF, sT0, sT1, sT2, sT3 = 36, 37, 38, 39, 40, 41, 42, 43
sARG = 44
sC, sTH, sROT, sBAD = 46, 48, 49, 47
sKX, sVX, sXX, sWX, sROTX, sROTW = 50, 51, 52, 53, 54, 55
sOUTP, sDBG, sD = 82, 84, 12
sOB, sWB, sOX, sWX2, sSTG, sMASK, sREQ, sDOFF, sDOFF1, sCTR, sSIG, sOWN, sSPIN = 56, 57, 58, 59, 60, 61, 62, 63, 34, 35, 37, 100, 101
sINI, sNEED, sPFO = 90, 91, 27
sTS = 70
srd = lambda b: f"s[{b}:{b+3}]"

AA = lambda u: 8 + u
XA = 16
XV = lambda qt: 17 + qt
WV = lambda i: 21 + i
KV0, KV1, VV0, VV1 = 25, 26, 27, 28
OVOFF, PFV, DUMMY = 29, 30, 31
KA = lambda j: 17 + j
VA = lambda t: 8 + t
S = lambda qt, e: 32 + qt * 8 + e
P = lambda qt: 64 + qt * 4
NM = lambda qt: 80 + qt * 4
LS = {1: 96, 3: 100}
ONES = 104
MG = lambda hh, qt: (108 if hh == 0 else 21) + qt
LV = {0: 112, 2: 113}
RC = lambda qt: 114 + qt
MT = (118, 119)
PK = lambda i: 120 + 4 * (i & 1)
O = lambda qt, t: 128 + (qt * 8 + t) * 4
KF = lambda par, kt, j: par * 32 + (kt * 4 + j) * 4
VF = lambda par, t: 64 + par * 32 + t * 4
Q = lambda hh, qt, j: 128 + hh * 64 + (qt * 4 + j) * 4
AF = lambda T: 128 + T * 4
XF = lambda par, qt: 192 + par * 16 + qt * 4
XP = lambda ks, qt: 64 + (ks * 4 + qt) * 4
PF = lambda p, ti, ks: ((p & 1) ^ 1) * 32 + (ti * 4 + ks) * 4
K0F = lambda kt, j: 128 + (kt * 4 + j) * 4
ACCB = {1: 128, 2: 32, 3: 64, 4: 96, 5: 160, 6: 192, 7: 224}


def ACC(T, qt):
    p = T >> 1
    i = ((T & 1) * 4 + qt) * 4
    return ("a", 224 + i) if p == 0 else ("v", ACCB[p] + i)


def rr(k, b, n=4):
    return f"{k}[{b}:{b+n-1}]"


MF = "v_mfma_f32_16x16x32_bf16"
idx = lambda st: (st + 4) % 5


class Seq:
    def __init__(self):
        self.mf = []
        self.puts = []

    def base(self):
        return len(self.mf)

    def put(self, g, x):
        self.puts.append((g, x))

    def gaps(self):
        G = Gaps(self.mf)
        for g, x in self.puts:
            G.put(g, x)
        return G


def unit_alias(kind, slot):
    u = (slot >> 1) + (4 if kind == "V" else 0)
    return [("X", u)] if u < 5 else [("W", u - 5)]


def dma_k(tile):
    slot = tile % R
    wr = ([("K", slot)] + unit_alias("K", slot), f"K{tile}")
    p = POL["kv"]
    return [I(f"s_add_u32 m0, s{sKVL}, {KBASE + slot*8192}"),
            I(f"buffer_load_dwordx4 v{KV0}, {srd(sK)}, s{sKX} offen {p} lds", tag=f"K{tile}", wr=wr),
            I(f"buffer_load_dwordx4 v{KV1}, {srd(sK)}, s{sKX} offen offset:1024 {p} lds", tag=f"K{tile}", wr=wr),
            I(f"s_add_u32 s{sKOFF}, s{sKOFF}, 8192"), I(f"s_xor_b32 s{sKX}, s{sKOFF}, s{sROT}")]


def dma_v(tile):
    slot = tile % R
    wr = ([("V", slot)] + unit_alias("V", slot), f"V{tile}")
    p = POL["kv"]
    return [I(f"s_add_u32 m0, s{sKVL}, {VBASE + slot*8192}"),
            I(f"buffer_load_dwordx4 v{VV0}, {srd(sV)}, s{sVX} offen {p} lds", tag=f"V{tile}", wr=wr),
            I(f"buffer_load_dwordx4 v{VV1}, {srd(sV)}, s{sVX} offen offset:1024 {p} lds", tag=f"V{tile}", wr=wr),
            I(f"s_add_u32 s{sVOFF}, s{sVOFF}, 8192"), I(f"s_xor_b32 s{sVX}, s{sVOFF}, s{sROT}")]


def rd_k(tile, kt, j, dst=None):
    slot = tile % R
    d = dst or rr('a', KF(tile & 1, kt, j))
    return I(f"ds_read_b128 {d}, v{KA(j)} offset:{slot*8192 + kt*4096}", rd=(("K", slot), f"K{tile}"))


def rd_v(tile, t, sec):
    slot = tile % R
    return I(f"ds_read_b64_tr_b16 {rr('a', VF(tile & 1, t) + 2*sec, 2)}, v{VA(t)} offset:{slot*8192 + sec*4096}", rd=(("V", slot), f"V{tile}"))


def kv_alias(u):
    return [("K", 2 * u), ("K", 2 * u + 1)] if u < 4 else ([("V", 2 * (u - 4)), ("V", 2 * (u - 4) + 1)] if u < 8 else [])


def st_dma_w(st, i):
    return I(f"buffer_load_dwordx4 v{WV(i)}, {srd(sW)}, s{sWX} offen offset:{i*1024} {POL['wq']} lds", tag=f"S{st}",
             wr=([("W", idx(st))] + kv_alias(idx(st) + 5), f"S{st}"))


def st_dma_x(st, qt):
    return I(f"buffer_load_dwordx4 v{XV(qt)}, {srd(sX)}, s{sXX} offen offset:{qt*1024} {POL['x']} lds", tag=f"S{st}",
             wr=([("X", idx(st))] + kv_alias(idx(st)), f"S{st}"))


W_ADV = lambda: mk(f"s_add_u32 s{sWOFF}, s{sWOFF}, 262144\ns_xor_b32 s{sWX}, s{sWOFF}, s{sROTW}")
X_ADV = lambda: mk(f"s_add_u32 s{sXOFF}, s{sXOFF}, 64\ns_xor_b32 s{sXX}, s{sXOFF}, s{sROTX}")


def stage_items(st):
    r = []
    for i in range(4):
        r.append(([I(f"s_add_u32 m0, s{sSTL}, {WOFFL + idx(st)*16384}")] if i == 0 else [], st_dma_w(st, i), W_ADV() if i == 3 else []))
    for q in range(4):
        r.append(([I(f"s_add_u32 m0, s{sSTL}, {idx(st)*16384}")] if q == 0 else [], st_dma_x(st, q), X_ADV() if q == 3 else []))
    return r


def rd_a(st, T, sec, dst=None, off=0):
    d = dst if dst is not None else AF(T)
    return I(f"ds_read_b64_tr_b16 {rr('a', d + 2*sec, 2)}, v{AA(T & 7)} offset:{off + sec*2048 + (T >> 3)*256}", rd=(("W", idx(st)), f"S{st}"))


def rd_x(st, qt, dst=None, off=0):
    d = dst if dst is not None else XF(st & 1, qt)
    return I(f"ds_read_b128 {rr('a', d)}, v{XA} offset:{off + qt*1024}", rd=(("X", idx(st)), f"S{st}"))


def add_step(Z, kk, L=None, dq=None, loop_end=None, second=True, vmneed=None):
    b = Z.base()
    for T in range(16):
        for qt in range(4):
            k, a = ACC(T, qt)
            Z.mf.append(f"{MF} {rr(k, a)}, {rr('a', AF(T))}, {rr('a', XF(kk & 1, qt))}, {rr(k, a)}")
    for T in range(8, 16):
        g = (T - 8) // 2 * 6 + (T & 1) * 2
        Z.put(b + g, rd_a(kk, T, 0)); Z.put(b + g + 1, rd_a(kk, T, 1))
    Z.put(b + 19, f"s_add_u32 s{sT0}, s{sRD}, 16384")
    Z.put(b + 20, f"s_cmp_eq_u32 s{sT0}, {5*16384}")
    Z.put(b + 21, f"s_cselect_b32 s{sT0}, 0, s{sT0}")
    Z.put(b + 22, f"s_sub_u32 s{sDELTA}, s{sT0}, s{sRD}")
    Z.put(b + 23, f"s_mov_b32 s{sRD}, s{sT0}")
    for u in range(8):
        Z.put(b + 23 + u // 2, f"v_add_u32 v{AA(u)}, s{sDELTA}, v{AA(u)}")
    Z.put(b + 27, f"v_add_u32 v{XA}, s{sDELTA}, v{XA}")
    Z.put(b + 30, WAIT(lgkm=0, vm=vmneed or [f"S{kk+1}"]))
    Z.put(b + 31, "s_barrier")
    Z.put(b + 11, WAIT(lgkm="auto"))
    if second:
        order = [("x", 0), ("x", 1), ("a", 0), ("a", 1), ("x", 2), ("x", 3)] + [("a", T) for T in range(2, 8)]
        slots = [32, 33, 34, 35, 36, 38, 40, 41, 42, 43, 44, 46, 48, 49, 50, 51, 52, 54, 56, 57]
        for kind, v in order:
            if kind == "x":
                Z.put(b + slots.pop(0), rd_x(kk + 1, v))
            else:
                Z.put(b + slots.pop(0), rd_a(kk + 1, v, 0)); Z.put(b + slots.pop(0), rd_a(kk + 1, v, 1))
        Z.put(b + 62, WAIT(lgkm="auto"))
    if L is not None:
        for g, qt in ((4, 1), (10, 2), (16, 3)):
            Z.put(b + g, st_dma_x(kk - 1 + L, qt))
        xa = X_ADV(); Z.put(b + 17, xa[0]); Z.put(b + 18, xa[1])
        Z.put(b + 24, f"s_add_u32 s{sDMA}, s{sDMA}, 16384")
        Z.put(b + 25, f"s_cmp_ge_u32 s{sDMA}, {5*16384}")
        Z.put(b + 26, f"s_cselect_b32 s{sDMA}, s{sSTL}, s{sDMA}")
        Z.put(b + 36, f"s_add_u32 m0, s{sDMA}, {WOFFL}")
        for n, g in enumerate((37, 45, 47, 53)):
            Z.put(b + g, st_dma_w(kk + L, n))
        wa = W_ADV(); Z.put(b + 54, wa[0]); Z.put(b + 56, wa[1])
        Z.put(b + 55, f"s_mov_b32 m0, s{sDMA}")
        Z.put(b + 60, st_dma_x(kk + L, 0))
    if dq is not None:
        f1 = [4, 5, 10, 16, 17, 22, 28]
        f2 = [37, 39, 45, 47, 53, 55, 59] if second else []
        for free, bar in ((f1, kk - 1), (f2, kk)):
            for g in free:
                if not dq or dq[0][0] > bar:
                    break
                _, (pre, d, post) = dq.pop(0)
                Z.put(b + g - 1, ("late", pre)); Z.put(b + g, d); Z.put(b + g, ("late", post))
    if OPT.get("diag1"):
        Z.put(b + 0, "s_memtime s[86:87]")
        Z.put(b + 28, "v_mov_b32 v2, s86"); Z.put(b + 29, "buffer_store_dword v2, v1, s[88:91], 0 offen"); Z.put(b + 30, "v_add_u32 v1, 4, v1")
    if loop_end:
        Z.put(b + 58, f"s_add_u32 s{sCNT}, s{sCNT}, 1")
        Z.put(b + 63, f"s_cmp_lt_u32 s{sCNT}, {loop_end}")
    return b


def mkgaps(Z):
    G = Gaps(Z.mf)
    for g, x in Z.puts:
        if isinstance(x, tuple) and x and x[0] == "late":
            G.va[g] += mk(x[1])
        else:
            G.put(g, x)
    return G


MSUM = (1, 3)


def qk_chain(tile, qt, kt, czero=False, hh=0, kf=None):
    d = S(qt, 4 * kt)
    r = []
    for j in range(4):
        c = ("0" if czero else rr("v", NM(qt))) if j == 0 else rr("v", d)
        a = rr("v", kf(kt, j)) if kf else rr("a", KF(tile & 1, kt, j))
        r.append(f"{MF} {rr('v', d)}, {a}, {rr('a', Q(hh, qt, j))}, {c}")
    return r


def sm_exp(qt, e): return f"v_exp_f32 v{S(qt,e)}, v{S(qt,e)}"
def sm_add(qt, e): return f"v_add_f32 v{LV[qt]}, v{LV[qt]}, v{S(qt,e)}"
def sm_cvt(qt, i): return f"v_cvt_pk_bf16_f32 v{P(qt)+i}, v{S(qt,2*i)}, v{S(qt,2*i+1)}"


def pv_list(s, b, zero):
    pv = []
    for t in range(8):
        o = rr("v", O(b, t))
        pv.append(f"{MF} {o}, {rr('a', VF(s & 1, t))}, {rr('v', P(b))}, {'0' if zero else o}")
    if b in MSUM:
        l = rr("v", LS[b])
        pv.append(f"{MF} {l}, {rr('v', ONES)}, {rr('v', P(b))}, {'0' if zero else l}")
    return pv


def add_epoch(Z, s, hh=0, qk_zero=False, pv_zero=False, ctl=None):
    reads = [rd_k(s + 2, 0, j) for j in range(4)] + [rd_v(s + 1, t, sec) for t in range(8) for sec in range(2)] + [rd_k(s + 2, 1, j) for j in range(4)]
    offs = []
    for b in range(4):
        o = Z.base()
        offs.append(o)
        Z.mf += qk_chain(s + 1, b, 0, qk_zero, hh) + pv_list(s, b, pv_zero) + qk_chain(s + 1, b, 1, qk_zero, hh)
        sq = (b + 1) & 3
        for e in range(8):
            Z.put(o + 2 * e, sm_exp(sq, e))
        if b in (0, 2):
            dsg = [1, 3, 5, 7, 11, 15]
            for i in range(4):
                Z.put(o + 4 * i + 3, sm_cvt(sq, i))
            if b == 0:
                Z.put(o + 1, sm_add(0, 6)); Z.put(o + 5, sm_add(0, 7))
            D = int(OPT.get('dist', R))
            d = dma_k(s + D) if b == 0 else dma_v(s + D - 1)
            Z.put(o + 8, d[0]); Z.put(o + 9, d[1]); Z.put(o + 13, d[2]); Z.put(o + 12, d[3]); Z.put(o + 14, d[4])
        else:
            dsg = [1, 5, 7, 9, 13, 15]
            for gg, e in ((1, 0), (3, 1), (5, 2), (9, 3), (11, 4), (13, 5)):
                Z.put(o + gg, sm_add(sq, e))
            for i in range(4):
                Z.put(o + 4 * i + 3, sm_cvt(sq, i))
            if b == 1:
                if ctl == 1 and OPT.get("pfph", "t") == "t":
                    Z.put(o + 16, I(f"buffer_load_dword v{DUMMY}, v{PFV}, {srd(sPF)}, s{sPFO} offen", tag="PF"))
                    Z.put(o + 17 + 1, sm_add(sq, 6)); Z.put(o + 17 + 5, sm_add(sq, 7))
                    Z.put(o + 17 + 2, f"s_add_u32 s{sPFO}, s{sPFO}, 1024")
                else:
                    Z.put(o + 16, sm_add(sq, 6)); Z.put(o + 16, sm_add(sq, 7))
        for gg in dsg:
            Z.put(o + gg, reads.pop(0))
        if OPT.get("slow"):
            Z.put(o + 6, ("late", f"s_nop {int(OPT['slow']) - 1}"))
        if b == 0:
            Z.put(o + 3, WAIT(lgkm="auto")); Z.put(o + 11, WAIT(lgkm="auto"))
        if b == 3:
            late = isinstance(ctl, int)
            Z.put(o + 15, WAIT(lgkm="auto", vm=None if late else [f"K{s+3}", f"V{s+2}"]))
            if ctl == "exit":
                Z.put(o + 12, f"s_add_u32 s{sCNT}, s{sCNT}, 1"); Z.put(o + 14, f"s_and_b32 s{sT0}, s{sCNT}, 3")
            if isinstance(ctl, int):
                Z.put(o + 14, f"s_cmp_ge_u32 s{sCNT}, {6 if OPT.get('early', '0') == '1' else 7}")
            if late:
                Z.put(o + 16, f"s_cbranch_scc1 L_late{ctl}")
            else:
                Z.put(o + 16, "s_barrier")
        if OPT.get("diag"):
            if b == 0:
                Z.put(o + 0, "s_memtime s[86:87]"); Z.put(o + 1, "s_memrealtime s[88:89]")
            if b == 3:
                Z.put(o + 2, "v_mov_b32 v102, s86"); Z.put(o + 2, "v_mov_b32 v103, s88")
                Z.put(o + 3, "ds_write_b64 v111, v[102:103]"); Z.put(o + 4, "v_add_u32 v111, 8, v111")
    offs.append(Z.base())
    return offs


def epoch(s, ctl=None):
    Z = Seq()
    add_epoch(Z, s, ctl=ctl)
    G = mkgaps(Z)
    if not OPT.get("diag") and not OPT.get("slow"):
        assert G.excess() == 0, G.excess()
    out = G.emit()
    if ctl == "exit":
        out += mk("s_cbranch_scc0 L_exit")
    return out


def xred(reg, tmp, op):
    return [f"v_mov_b32 v{tmp}, v{reg}", f"v_permlane16_swap_b32 v{reg}, v{tmp}", f"{op} v{reg}, v{reg}, v{tmp}",
            f"v_mov_b32 v{tmp}, v{reg}", f"v_permlane32_swap_b32 v{reg}, v{tmp}", f"{op} v{reg}, v{reg}, v{tmp}"]


def maxops(hh, qt):
    m, t = MT
    r = [f"v_max3_f32 v{m}, v{S(qt,0)}, v{S(qt,1)}, v{MG(hh,qt)}", f"v_max3_f32 v{t}, v{S(qt,2)}, v{S(qt,3)}, v{S(qt,4)}",
         f"v_max3_f32 v{m}, v{m}, v{S(qt,5)}, v{S(qt,6)}", f"v_max3_f32 v{m}, v{m}, v{t}, v{S(qt,7)}"]
    r += xred(m, t, "v_max_f32")
    r += [f"v_sub_f32 v{S(qt,e)}, v{S(qt,e)}, v{m}" for e in range(8)]
    r += [f"v_sub_f32 v{NM(qt)+i}, 0, v{m}" for i in range(4)]
    return r


def conv_unit(p, qt):
    hh, j = p >> 2, p & 3
    o = []
    (k0, b0), (k1, b1) = ACC(2 * p, qt), ACC(2 * p + 1, qt)
    if k0 == "a":
        o += [f"v_accvgpr_read_b32 v{1+x}, a{b0+x}" for x in range(4)] + [f"v_accvgpr_read_b32 v{21+x}, a{b1+x}" for x in range(4)]
        b0, b1 = 1, 21
    o += [f"v_mul_f32 v{b+x}, s{sC}, v{b+x}" for b in (b0, b1) for x in (0, 1)]
    o += [f"v_cvt_pk_bf16_f32 v{b0}, v{b0}, v{b0+1}", f"v_cvt_pk_bf16_f32 v{b1}, v{b1}, v{b1+1}"]
    o += [f"v_mul_f32 v{b+x}, s{sC}, v{b+x}" for b in (b0, b1) for x in (2, 3)]
    q = Q(hh, qt, j)
    o += [f"v_cvt_pk_bf16_f32 v{b0+2}, v{b0+2}, v{b0+3}", f"v_cvt_pk_bf16_f32 v{b1+2}, v{b1+2}, v{b1+3}",
          f"v_permlane16_swap_b32 v{b0}, v{b1}",
          f"v_accvgpr_write_b32 a{q}, v{b0}", f"v_accvgpr_write_b32 a{q+2}, v{b1}",
          f"v_permlane16_swap_b32 v{b0+2}, v{b1+2}",
          f"v_accvgpr_write_b32 a{q+1}, v{b0+2}", f"v_accvgpr_write_b32 a{q+3}, v{b1+2}"]
    if OPT.get("nomul"):
        o = [x for x in o if not x.startswith("v_mul")]
    return o


def lfin(qt):
    r = RC(qt)
    if qt in MSUM:
        o = [f"v_cmp_nge_f32 vcc, s{sTH}, v{LS[qt]}", f"v_rcp_f32 v{r}, v{LS[qt]}"]
    else:
        l = LV[qt]
        o = xred(l, r, "v_add_f32") + [f"v_cmp_nge_f32 vcc, s{sTH}, v{l}", f"v_rcp_f32 v{r}, v{l}", f"v_mov_b32 v{l}, 0"]
    return o


def lflag():
    return [f"s_or_b32 s{sBAD}, s{sBAD}, vcc_lo", f"s_or_b32 s{sBAD}, s{sBAD}, vcc_hi"]


PKN = [0]


def st_o(src, qt, u):
    so = sT3 if qt == 3 else (sOOFF, sT1, sT2)[qt]
    return I(f"buffer_store_dwordx4 {src}, v{OVOFF}, {srd(sO)}, s{so} offen offset:{u*1024} {POL['ost']}", tag="ST")


def o_unit(qt, u, mode="st"):
    b = O(qt, 2 * u)
    t = PK(PKN[0]); PKN[0] += 1
    o = []
    r = RC(qt)
    for i in range(4):
        if mode == "pk":
            sel = "op_sel_hi:[1,0]" if r % 2 == 0 else "op_sel:[0,1] op_sel_hi:[1,1]"
            o.append(f"v_pk_mul_f32 v[{b+2*i}:{b+2*i+1}], v[{b+2*i}:{b+2*i+1}], v[{r & ~1}:{(r & ~1) + 1}] {sel}")
        else:
            o += [f"v_mul_f32 v{b+2*i}, v{r}, v{b+2*i}", f"v_mul_f32 v{b+2*i+1}, v{r}, v{b+2*i+1}"]
        o.append(f"v_cvt_pk_bf16_f32 v{t+i}, v{b+2*i}, v{b+2*i+1}")
        if mode == "park":
            o.append(f"v_accvgpr_write_b32 a{Q(1, qt, u) + i}, v{t+i}")
    if mode != "park":
        o.append(st_o(rr('v', t), qt, u))
    return o


def o_offsets():
    return [f"s_add_u32 s{sT1}, s{sOOFF}, 4096", f"s_add_u32 s{sT2}, s{sOOFF}, 8192", f"s_add_u32 s{sT3}, s{sOOFF}, 12288",
            f"s_cmp_eq_u32 s{sWAVE}, 3", f"s_cselect_b32 s{sT3}, {OWS_BRANCH}, s{sT3}"]


def o_epi(qt, mode="st"):
    o = lfin(qt)
    first = o_unit(qt, 0, mode)
    o += first[:3] + lflag() + first[3:]
    for u in range(1, 4):
        o += o_unit(qt, u, mode)
    return o


def boundary(s):
    Z = Seq()
    PKN[0] = 0
    A = add_epoch(Z, s, hh=1, qk_zero=True)
    B = add_epoch(Z, s + 1, hh=0, pv_zero=True)
    for g, x in zip((2, 4, 5, 6, 7), o_offsets()):
        Z.put(A[0] + g, x)
    Z.put(B[2] + 0, f"s_lshl_b32 s{sT0}, s{sWAVE}, 2"); Z.put(B[2] + 1, f"s_add_u32 s{sT0}, s{sT0}, {FLAG}")
    Z.put(A[0] + 1, f"v_mov_b32 v{ZERO}, 0"); Z.put(A[1] + 3, I(poll_issue(2).text.replace(" sc1", ""), tag="POLL"))
    Z.put(B[3] + 3, "ds_write_b32 v2, v1")
    Z.put(B[3] + 8, WAIT(lgkm=2)); Z.put(B[3] + 10, "s_barrier"); Z.put(B[3] + 11, "ds_read_b128 v[4:7], v3")
    G = mkgaps(Z)
    qm = [f"v_accvgpr_mov_b32 a{128+i}, a{192+i}" for i in range(64)]
    e = [o_epi(q, "park") for q in range(4)]
    n2 = len(lfin(2)) + 5
    spread(G, qm, A[0], A[1] + 2)
    spread(G, maxops(1, 0) + e[0], A[1] + 3, A[2] + 10)
    spread(G, maxops(1, 1), A[2] + 11, A[3] + 0)
    spread(G, e[1], A[3] + 1, B[0] + 2)
    spread(G, maxops(1, 2) + e[2][:n2], B[0] + 3, B[0] + 12)
    spread(G, maxops(1, 3), B[0] + 13, B[1] + 2)
    spread(G, e[2][n2:], B[1] + 3, B[2] + 1)
    spread(G, e[3][:12] + [f"v_mov_b32 v1, s{sBAD}", f"v_mov_b32 v2, s{sT0}", f"v_mov_b32 v3, {FLAG}"] + e[3][12:], B[2] + 2, B[3] + 2)
    spread(G, oaddr(), B[3] + 4, B[3] + 15)
    print("boundary est cycles:", sum(16 + G.cost(g) for g in range(len(G.mf))))
    chk = [WAIT(vm=["POLL"])] + mk(f"v_readfirstlane_b32 s{sT0}, v{POLLV}\ns_cmp_ge_u32 s{sT0}, s{sNEED}\ns_cbranch_scc0 L_spin2\nL_spin2b:")
    return autonop(G.emit() + chk + badcheck("L_loop", lgkm=2) + mk("s_branch L_restart"))


RESTART = f"""L_restart:
s_mov_b32 s{sMODE}, 1
s_waitcnt vmcnt(0) lgkmcnt(0)
s_barrier
s_branch L_start"""


def badcheck(ok, lgkm=0):
    return mk(f"""s_waitcnt lgkmcnt({lgkm})
v_or3_b32 v4, v4, v5, v6
v_or_b32 v4, v4, v7
v_readfirstlane_b32 s{sT0}, v4
s_cmp_eq_u32 s{sT0}, 0
s_cbranch_scc1 {ok}
s_cmp_eq_u32 s{sMODE}, 0
s_cbranch_scc0 {ok}""")


LATE = [(q, u) for q in range(4) for u in range(4)]
def late_plan():
    if OPT.get("early", "0") == "1":
        return dict(zip((47, 48, 49, 50, 51, 52, 53, 55, 56, 57, 58, 59), (1, 1, 1, 1, 1, 1, 2, 1, 1, 2, 2, 2)))
    return dict(zip((55, 56, 57, 58, 59), (3, 3, 3, 3, 4)))


W2BASE = 98304
W2SLOT = [2, 3, 1, 0]
WV2 = lambda i: 21 + i
BV = lambda qi: 1 + qi
OUTV, POLLV, POLLA, ZERO = 3, 16, 30, 120
AA2 = lambda n: 17 + n
ACC2 = lambda qi, n: 32 + (qi * 4 + n) * 4
AF2 = lambda par, n: 64 + (par * 4 + n) * 4
BF = lambda st, ks, qi: (((st % 4) * 4 + ks) * 2 + qi) * 4


def oaddr():
    a, b = MT
    return f"""v_lshrrev_b32 v{a}, 3, v0
v_and_b32 v{b}, 6, v{a}
v_xor_b32 v{b}, v{b}, v0
v_and_b32 v{b}, 7, v{b}
v_lshlrev_b32 v{b}, 4, v{b}
v_lshl_add_u32 v{WV2(0)}, v{a}, 10, v{b}
v_add_u32 v{WV2(1)}, 7168, v{WV2(0)}
v_add_u32 v{WV2(2)}, {2*7168}, v{WV2(0)}
v_add_u32 v{WV2(3)}, {3*7168}, v{WV2(0)}""".split("\n")


def w2_alias(st):
    u = 6 + W2SLOT[st % 4]
    return [("W2", st % 4)] + kv_alias(u) + [("W", u - 5)]


def w2_dma(st):
    return [I(f"s_add_u32 m0, s{sSTL}, {W2BASE + W2SLOT[st % 4]*16384}")] + \
           [I(f"buffer_load_dwordx4 v{WV2(i)}, {srd(sPF)}, s{sWX2} offen offset:{i*1024} lds", tag=f"T{st}", wr=(w2_alias(st), f"T{st}")) for i in range(4)]


def b_loads(st):
    return [I(f"buffer_load_dwordx4 {rr('a', BF(st, ks, qi))}, v{BV(qi)}, {srd(sO)}, s{sOX} offen offset:{ks*1024} sc1", tag=f"T{st}") for ks in range(4) for qi in range(2)]


def head_of(reg, which):
    o = [f"s_xor_b32 s3, s{reg}, s{sMASK}", "s_and_b32 s3, s3, 15", "s_lshl_b32 s3, s3, 1", f"s_lshr_b32 s{sT0}, s{reg}, 4", f"s_add_u32 s3, s3, s{sT0}"]
    if "o" in which:
        o += [f"s_mul_i32 s{sOX}, s3, {120*4096}", f"s_add_u32 s{sOX}, s{sOX}, s{sOB}"]
    if "w" in which:
        o += [f"s_lshl_b32 s3, s3, 17", f"s_add_u32 s{sWX2}, s3, s{sWB}"]
    return o


def signal(half):
    bit = 1 << half
    return mk(f"""s_and_b32 s{sT0}, s{sSIG}, {bit}
s_cselect_b32 s{sT0}, {BIG}, s{sOWN}
s_or_b32 s{sSIG}, s{sSIG}, {bit}
v_lshl_add_u32 v{MT[0]}, v0, 22, s{sT0}
v_mov_b32 v{MT[1]}, 1""") + [I(f"buffer_atomic_add v{MT[1]}, v{MT[0]}, {srd(sMG)}, 0 offen offset:{256*half}", tag="SIG", opt=True)]


def announce():
    return mk(f"""L_announce:
v_mov_b32 v6, 0
v_mov_b32 v7, 1
s_mov_b64 exec, 1
global_atomic_add v6, v7, s[{sDBG}:{sDBG+1}]
s_mov_b64 exec, -1
s_branch L_annback""")


def late_block(ph, s):
    early = s < 55
    o = []
    if OPT.get("early", "0") == "1":
        o = mk(f"L_late{ph}:\ns_cmp_eq_u32 s{sCNT}, 7\ns_cbranch_scc1 L_lateb{ph}") if early else mk(f"L_lateb{ph}:")
    else:
        o = mk(f"L_late{ph}:")
    need = [t for t in (f"K{s+3}", f"V{s+2}") if int(t[1:]) < 64]
    if s == 61:
        need = need + ["ST"]
    if need:
        o.append(WAIT(vm=need))
    o.append(I("s_barrier"))
    if str(ph) == OPT.get("pfph", "t") and not early:
        o.append(I(f"buffer_load_dword v{DUMMY}, v{PFV}, {srd(sPF)}, 0 offen", tag="PF"))
    plan = late_plan()
    if s in plan:
        lo = sum(n for e, n in plan.items() if e < s)
        o += [st_o(rr("a", Q(1, q, u)), q, u) for q, u in LATE[lo:lo + plan[s]]]
    if s == 60 and OPT.get("diag"):
        o += mk(f"""s_lshl_b32 s3, s{sWAVE}, 10
s_add_u32 s3, s3, {FLAG + 20480}
v_lshl_add_u32 v4, v0, 3, s3
ds_read_b64 v[6:7], v4
s_lshl_b32 s3, s2, 11
s_lshl_b32 s{sT0}, s{sWAVE}, 9
s_add_u32 s3, s3, s{sT0}
s_add_u32 s3, s3, {(1<<27) + 0x40000}
v_lshl_add_u32 v5, v0, 3, s3
s_waitcnt lgkmcnt(0)
global_store_dwordx2 v5, v[6:7], s[64:65]""")
    if s == 61:
        o += signal(0)
    if s in (60, 61):
        st = s - 60
        o += mk([f"s_mov_b32 s{sSTG}, {st}"] + head_of(sSTG, "w")) + w2_dma(st)[:1] + mk("s_nop 0") + w2_dma(st)[1:]
    return autonop(o + mk(f"s_branch L_lateback{ph}"))


def poll_issue(half):
    if half == 2:
        return I(f"global_load_dword v{POLLV}, v{ZERO}, s[{sDBG}:{sDBG+1}] sc1", tag="POLL")
    return I(f"buffer_load_dword v{POLLV}, v{POLLA}, {srd(sMG)}, 0 offen offset:{256*half} sc1", tag="POLL")


def spin(half, lbl, back):
    return mk(f"""{lbl}:
s_mov_b32 s3, 0
v_mov_b32 v{ZERO}, 0
{lbl}_l:
s_sleep 4""") + [poll_issue(half)] + mk(f"""s_waitcnt vmcnt(0)
v_readfirstlane_b32 s{sT0}, v{POLLV}
s_add_u32 s3, s3, 1
s_cmp_ge_u32 s3, 0x40000
s_cbranch_scc1 {back}
s_cmp_ge_u32 s{sT0}, 16
s_cbranch_scc0 {lbl}_l
s_branch {back}""")


def pack_inplace(qt, u):
    b = O(qt, 2 * u)
    r = RC(qt)
    sel = "op_sel_hi:[1,0]" if r % 2 == 0 else "op_sel:[0,1] op_sel_hi:[1,1]"
    o = [f"v_pk_mul_f32 v[{b+2*i}:{b+2*i+1}], v[{b+2*i}:{b+2*i+1}], v[{r & ~1}:{(r & ~1) + 1}] {sel}" for i in range(4)]
    o += [f"v_cvt_pk_bf16_f32 v{b+i}, v{b+2*i}, v{b+2*i+1}" for i in range(4)]
    return o


def final(s):
    Z = Seq()
    offs = []
    for b in range(4):
        offs.append(Z.base())
        Z.mf += pv_list(s, b, False)
    offs.append(Z.base())
    g = 1
    for x in [f"s_add_u32 s{sOOFF}, s{sOOFF}, {120*4096}"] + o_offsets() + [f"s_mov_b32 s{sO+2}, {OWS_BRANCH}", f"s_mov_b32 s{sD}, s{sOUTP}", f"s_mov_b32 s{sD+1}, s{sOUTP+1}",
              f"s_mov_b32 s{sD+2}, {1920*2048}", f"s_mov_b32 s{sD+3}, 0x20000", f"s_mov_b32 s{sREQ}, 0", f"s_mov_b32 s{sCNT}, 0"]:
        Z.put(g, x); g += 1
    G = mkgaps(Z)

    def sm(q):
        r = []
        for e in range(8):
            r.append(sm_exp(q, e))
            if e >= 1 and q not in MSUM: r.append(sm_add(q, e - 1))
            if e >= 2 and e % 2 == 0: r.append(sm_cvt(q, e // 2 - 1))
        r += ([sm_add(q, 7)] if q not in MSUM else []) + [sm_cvt(q, 3)]
        return r
    spread(G, [sm_add(0, 6), sm_add(0, 7)] + sm(1), offs[0], offs[1] - 1)
    spread(G, sm(2), offs[1], offs[2] - 1)
    spread(G, sm(3), offs[2], offs[3] - 1)
    spread(G, lfin(0)[:-1] + lflag() + lfin(1) + lflag() + lfin(2)[:-1] + lflag(), offs[3], offs[4] - 1)
    pre = mk(f"v_lshl_add_u32 v{POLLA}, v0, 22, s{sCTR}") + [I("s_waitcnt lgkmcnt(0)"), poll_issue(0)]
    out = pre + G.emit()
    out += mk(f"""v_lshlrev_b32 v{BV(0)}, 4, v0
v_add_u32 v{BV(1)}, s{sSPIN}, v{BV(0)}
v_lshrrev_b32 v4, 2, v0
v_and_b32 v5, 3, v0
v_bfe_u32 v6, v0, 3, 2
v_lshlrev_b32 v4, 7, v4
v_lshl_add_u32 v4, v6, 5, v4
v_lshl_add_u32 v4, v5, 3, v4
v_add_u32 v{AA2(0)}, {W2BASE}, v4
v_xor_b32 v{AA2(1)}, 32, v{AA2(0)}
v_xor_b32 v{AA2(2)}, 64, v{AA2(0)}
v_xor_b32 v{AA2(3)}, 0x60, v{AA2(0)}""")
    out += mk(lfin(3) + lflag())
    out += mk(f"""s_lshl_b32 s{sT0}, s{sWAVE}, 2
s_add_u32 s{sT0}, s{sT0}, {FLAG1}
v_mov_b32 v8, s{sBAD}
v_mov_b32 v9, s{sT0}
v_mov_b32 v10, {FLAG1}
ds_write_b32 v9, v8""")
    out += [WAIT(vm=["POLL"])] + mk(f"""v_readfirstlane_b32 s{sT0}, v{POLLV}
s_cmp_ge_u32 s{sT0}, s{sNEED}
s_cbranch_scc0 L_spin0""")
    part1 = autonop(out)
    out = mk(f"L_spin0b:\ns_waitcnt lgkmcnt(0)\ns_barrier\nds_read_b128 v[4:7], v10\nv_mov_b32 v{POLLA}, {BIG}")
    pk = [x for q in range(4) for u in range(4) for x in pack_inplace(q, u)]
    n = 0
    for st in range(3):
        out += mk([f"s_mov_b32 s{sSTG}, {st}"] + head_of(sSTG, "ow" if st == 2 else "o"))
        if st == 2:
            out += w2_dma(2)[:1]
        for l in b_loads(st) + (w2_dma(2)[1:] if st == 2 else []):
            out += [l] + mk(pk[n:n + 4]); n += 4
    out += mk(pk[n:])
    out += [st_o(rr("v", O(q, 2 * u)), q, u) for q, u in LATE[:int(OPT.get("o1pre", 4))]]
    out += mk(f"""v_and_b32 v8, 15, v0
v_bfe_u32 v9, v0, 5, 1
v_bfe_u32 v11, v0, 4, 1
v_lshl_or_b32 v9, v11, 1, v9
v_lshlrev_b32 v9, 4, v9
v_lshl_add_u32 v{OUTV}, v8, 11, v9""")
    out += mk([f"s_mov_b32 s{sSTG}, 3"] + head_of(sSTG, "ow"))
    out += badcheck("L_oproj") + mk("s_branch L_restart")
    return part1, autonop(out)


def rd_a2(st, ks, n, sec):
    return I(f"ds_read_b64_tr_b16 {rr('v', AF2(ks & 1, n) + 2*sec, 2)}, v{AA2(n)} offset:{W2SLOT[st % 4]*16384 + ks*4096 + sec*2048}", rd=(("W2", st % 4), f"T{st}"))


def stage2(st, loop=False):
    out = [WAIT(vm=[f"T{st}"])]
    if loop and st % 4 == 1:
        out += mk(f"v_readfirstlane_b32 s{sT0}, v{POLLV}\ns_nop 1\ns_cmp_ge_u32 s{sT0}, s{sREQ}\ns_cbranch_scc0 L_spin1")
        head, out = out, mk("L_spin1b:")
    else:
        head = []
    out.append(I("s_barrier"))
    ld = None
    if st + 3 < 32:
        w = w2_dma(st + 3)
        out.append(w[0])
        ld = w[1:] + b_loads(st + 3)
    out += [rd_a2(st, 0, n, sec) for n in range(4) for sec in range(2)]
    if loop and st % 4 == 2:
        out.append(poll_issue(1))
    if ld is not None:
        out += ld[:2]; ld = ld[2:]
    mf = []
    for ks in range(4):
        for n in range(4):
            for qi in range(2):
                a = rr("v", ACC2(qi, n))
                mf.append(f"{MF} {a}, {rr('v', AF2(ks & 1, n))}, {rr('a', BF(st, ks, qi))}, {'0' if st == 0 and ks == 0 else a}")
    G = Gaps(mf)
    out.append(WAIT(lgkm="auto"))
    for ks in range(4):
        if ks < 3:
            for n in range(4):
                for sec in range(2):
                    G.put(8 * ks + 2 * n + sec, rd_a2(st, ks + 1, n, sec))
            G.put(8 * ks + 7, WAIT(lgkm="auto"))
        G.put(8 * ks + 3, WAIT(lgkm="auto"))
    if ld is not None:
        for i, l in enumerate(ld):
            G.put(1 + 3 * i, l)
        adv = [f"s_add_u32 s{sSTG}, s{sSTG}, 1"] + head_of(sSTG, "ow")
        for i, p in enumerate(adv):
            G.put((20 + i) if i < 6 else 29 + (i - 6) // 2, p)
    if st < 4:
        pre = int(OPT.get("o1pre", 4))
        per = (16 - pre) // 4
        for i, (q, u) in enumerate(LATE[pre + per * st: pre + per * (st + 1)]):
            G.put(2 + (32 // per) * i, st_o(rr("v", O(q, 2 * u)), q, u))
    if OPT.get("diag2"):
        out.insert(2, I("s_memtime s[86:87]"))
        G.put(30, "v_mov_b32 v13, s86"); G.put(31, "ds_write_b32 v12, v13"); G.put(31, "v_add_u32 v12, 4, v12")
    out += G.emit()
    if loop and st % 4 == 3:
        out += mk(f"""s_add_u32 s{sCNT}, s{sCNT}, 1
s_cmp_eq_u32 s{sCNT}, 2
s_cselect_b32 s{sREQ}, s{sNEED}, 0
s_cmp_eq_u32 s{sCNT}, 1
s_cbranch_scc1 L_signal1""")
    return head, out


def out_store():
    o = ["s_nop 7"]
    for qi in range(2):
        for p in range(2):
            b0, b1 = ACC2(qi, 2 * p), ACC2(qi, 2 * p + 1)
            t = 64 + (qi * 2 + p) * 4
            o += [f"v_cvt_pk_bf16_f32 v{t}, v{b0}, v{b0+1}", f"v_cvt_pk_bf16_f32 v{t+2}, v{b1}, v{b1+1}",
                  f"v_cvt_pk_bf16_f32 v{t+1}, v{b0+2}, v{b0+3}", f"v_cvt_pk_bf16_f32 v{t+3}, v{b1+2}, v{b1+3}",
                  f"v_permlane16_swap_b32 v{t}, v{t+2}", f"v_permlane16_swap_b32 v{t+1}, v{t+3}",
                  f"buffer_store_dwordx4 {rr('v', t)}, v{OUTV}, {srd(sD)}, s{sDOFF1 if qi else sDOFF} offen offset:{p*64}"]
    return autonop(mk(o))


def kaddr():
    return f"""v_and_b32 v5, 15, v0
v_bfe_u32 v6, v0, 5, 1
v_bfe_u32 v7, v0, 4, 1
v_lshl_or_b32 v6, v7, 1, v6
v_xor_b32 v6, v6, v5
v_lshlrev_b32 v6, 4, v6
v_lshl_add_u32 v{KA(0)}, v5, 8, v6
v_xor_b32 v{KA(1)}, 64, v{KA(0)}
v_xor_b32 v{KA(2)}, 0x80, v{KA(0)}
v_xor_b32 v{KA(3)}, 0xc0, v{KA(0)}
v_lshrrev_b32 v5, 2, v0
v_and_b32 v6, 7, v5
v_lshlrev_b32 v5, 8, v5
v_lshl_add_u32 v5, v6, 5, v5
v_and_b32 v6, 3, v0
v_lshl_add_u32 v5, v6, 3, v5
v_add_u32 v5, {VBASE}, v5""".split("\n")


def vaddr():
    return [f"v_xor_b32 v{VA(t)}, {t<<5}, v5" for t in range(8)]


def consts():
    o = [f"v_and_b32 v6, 3, v0", "v_cmp_eq_u32 vcc, 0, v6", "v_mov_b32 v7, 0x3f803f80", f"v_mov_b32 v{LV[0]}, 0", f"v_mov_b32 v{LV[2]}, 0"]
    o += [f"v_cndmask_b32 v{ONES+i}, 0, v7, vcc" for i in range(4)]
    for hh in range(2):
        o += [f"v_mov_b32 v{MG(hh,q)}, 0xff800000" for q in range(3)] + [f"v_mov_b32 v{MG(hh,3)}, s{sT2}"]
    return o


def tail_region(dq):
    Z = Seq()
    for kk in (8, 9, 10):
        add_step(Z, kk, dq=dq)
    b11 = add_step(Z, 11, dq=dq, second=False, vmneed=["S12", "S13", "S14"])
    assert not dq
    blk = {}

    def add_block(p):
        blk[p] = Z.base()
        if p < 7:
            order = [(ti, qt, ks) for qt in range(4) for ti in range(2) for ks in range(4)]
        else:
            order = [(ti, qt, ks) for h in range(2) for qt in range(4) for ti in range(2) for ks in (2 * h, 2 * h + 1)]
        for ti, qt, ks in order:
            k, a = ACC(2 * p + ti, qt)
            Z.mf.append(f"{MF} {rr(k, a)}, {rr('a', PF(p, ti, ks))}, {rr('a', XP(ks, qt))}, {rr(k, a)}")
    for p in range(6):
        add_block(p)
    qk0 = Z.base()
    for qt in range(4):
        Z.mf += qk_chain(0, qt, 0, True, 0, K0F) + qk_chain(0, qt, 1, True, 0, K0F)
    add_block(6); add_block(7)
    E = add_epoch(Z, 0, pv_zero=True)
    ra = lambda p, ti, ks, sec: rd_a(12 + ks, 2 * p + ti, sec, dst=PF(p, ti, ks), off=ks * 16384)
    rx = lambda ks, qt: rd_x(12 + ks, qt, dst=XP(ks, qt), off=ks * 16384)
    g = b11 + 32
    for ks in range(3):
        for ti in range(2):
            Z.put(g, ra(0, ti, ks, 0)); Z.put(g + 1, ra(0, ti, ks, 1)); g += 2
    for qt in range(2):
        for ks in range(3):
            Z.put(g, rx(ks, qt)); g += 1
    assert g == b11 + 50
    Z.put(b11 + 50, WAIT(vm=["S15"])); Z.put(b11 + 51, "s_barrier")
    g = b11 + 52
    for x in [rx(3, 0), ra(0, 0, 3, 0), ra(0, 0, 3, 1), ra(0, 1, 3, 0), ra(0, 1, 3, 1), rx(3, 1)] + [rx(ks, qt) for qt in (2, 3) for ks in range(4)]:
        Z.put(g, x); g += 1
    Z.put(b11 + 63, WAIT(lgkm="auto"))
    Z.put(blk[0] + 7, WAIT(lgkm="auto"))
    nxt = {0: 1, 1: 2, 2: 3, 3: 4, 4: 5, 5: 6, 6: 7}
    for p, n in nxt.items():
        g0 = blk[p] + (3 if p == 0 else 1)
        rs = [ra(n, ti, ks, sec) for ti in range(2) for ks in range(4) for sec in range(2)]
        if p == 5:
            g0 = qk0 + 1
        slots = [g0 + (i * 3) // 2 for i in range(16)]
        for gg, x in zip(slots, rs):
            Z.put(gg, x)
        Z.put((blk[n] - 1), WAIT(lgkm="auto"))
    Z.put(blk[0] + 12, WAIT(lgkm=6)); Z.put(blk[0] + 13, "s_barrier")
    Z.put(blk[5] + 0, WAIT(vm=["K0"])); Z.put(blk[5] + 1, "s_barrier")
    for i, (kt, j) in enumerate([(kt, j) for kt in range(2) for j in range(4)]):
        Z.put(blk[5] + 3 + 3 * i, rd_k(0, kt, j, dst=rr("v", K0F(kt, j))))
    Z.put(qk0 - 1, WAIT(lgkm="auto"))
    Z.put(blk[6] + 29, WAIT(lgkm=0, vm=["K1", "V0", "K2", "V1"])); Z.put(blk[6] + 30, "s_barrier")
    for i, (kt, j) in enumerate([(kt, j) for kt in range(2) for j in range(4)]):
        Z.put(blk[7] + 2 * i, rd_k(1, kt, j))
    for i, (t, sec) in enumerate([(t, sec) for t in range(8) for sec in range(2)]):
        Z.put(blk[7] + 16 + i, rd_v(0, t, sec))
    Z.put(blk[7] + 31, WAIT(lgkm="auto"))
    def kv(grp, g0, g1):
        Z.put(g0 - 1, ("late", [grp[0]])); Z.put(g0, grp[1]); Z.put(g1, grp[2]); Z.put(g1, ("late", grp[3:]))
    D = int(OPT.get('dist', R))
    if D == 8:
        kv(dma_k(0), blk[0] + 5, blk[0] + 8)
        kv(dma_k(1), blk[0] + 28, blk[0] + 30)
        plan = [(1, dma_v(0), dma_k(2)), (2, dma_v(1), dma_k(3)), (3, dma_v(2), None), (4, dma_k(4), None), (5, dma_v(3), None)]
        for p, g1, g2 in plan:
            if p == 5:
                kv(g1, blk[p] + 4, blk[p] + 16)
            elif g2 is None:
                kv(g1, blk[p] + 9, blk[p] + 27)
            else:
                kv(g1, blk[p] + 3, blk[p] + 9); kv(g2, blk[p] + 21, blk[p] + 28)
        kv(dma_k(5), qk0 + 9, qk0 + 27)
        kv(dma_k(6), blk[6] + 9, blk[6] + 21)
        kv(dma_v(4), blk[7] + 1, blk[7] + 5)
        kv(dma_k(7), blk[7] + 9, blk[7] + 13)
        kv(dma_v(5), E[0] + 2, E[0] + 4)
        kv(dma_v(6), E[1] + 3, E[1] + 11)
    else:
        seqs = [dma_k(0)]
        for t in range(1, D):
            seqs += [dma_k(t), dma_v(t - 1)]
        one = [(blk[0] + 5, blk[0] + 28)] + [(blk[p] + 9, blk[p] + 27) for p in (1, 2, 3, 4)] + [(blk[5] + 4, blk[5] + 16), (qk0 + 9, qk0 + 27),
               (blk[6] + 9, blk[6] + 21), (blk[7] + 1, blk[7] + 9)]
        two = {7: [(blk[6] + 3, blk[6] + 9), (blk[6] + 15, blk[6] + 21)], 8: [(blk[7] + 1, blk[7] + 5), (blk[7] + 9, blk[7] + 13)],
               6: [(qk0 + 3, qk0 + 9), (qk0 + 21, qk0 + 27)], 5: [(blk[5] + 4, blk[5] + 10), (blk[5] + 16, blk[5] + 26)]}
        extra = len(seqs) - len(one)
        dbl = [8, 7, 6, 5][:max(0, extra)]
        slots = []
        for i, pr in enumerate(one):
            slots += two[i] if i in dbl else [pr]
        if D == 7:
            seqs = [x for x in seqs if x[1].kw["tag"] not in ("V4", "V5")] + [dma_v(4), dma_v(5)]
        slots = slots[len(slots) - len(seqs):] if OPT.get("late") else slots
        for grp, (g0, g1) in zip(seqs, slots):
            kv(grp, g0, g1)
    Z.put(blk[4] + 0, f"s_cmp_eq_u32 s{sWAVE}, 3"); Z.put(blk[4] + 1, f"s_mov_b32 s{sT2}, 0xff800000")
    Z.put(blk[4] + 2, f"s_cselect_b32 s{sT2}, 0x43480000, s{sT2}")
    Z.put(blk[4] + 3, f"s_mov_b32 s{sCNT}, 0"); Z.put(blk[4] + 4, f"s_mov_b32 s{sPFO}, 0")
    if OPT.get("ts"):
        Z.put(blk[0], f"s_memtime s[{sTS+4}:{sTS+5}]"); Z.put(E[0] + 6, f"s_memtime s[{sTS+6}:{sTS+7}]")
    G = mkgaps(Z)
    spread(G, kaddr(), b11 + 32, b11 + 62)
    nb = {0: blk[1], 1: blk[2], 2: blk[3], 3: blk[4], 4: blk[5], 5: qk0, 6: blk[7]}
    for p in range(7):
        for qt in range(4):
            g0 = blk[p] + 8 * qt + 10
            extra = []
            if p == 5 and qt == 0:
                extra = consts()
            spread(G, conv_unit(p, qt) + extra, g0, g0 + 7)
    hook = blk[5] + 18
    spread(G, maxops(0, 0), qk0 + 10, qk0 + 19)
    spread(G, maxops(0, 1), qk0 + 20, qk0 + 29)
    spread(G, maxops(0, 2), qk0 + 30, blk[6] + 9)
    spread(G, maxops(0, 3), blk[6] + 10, blk[6] + 25)
    spread(G, vaddr(), blk[6] + 26, blk[7] + 8)
    sm0 = []
    for e in range(8):
        sm0.append(sm_exp(0, e))
        if 1 <= e <= 6: sm0.append(sm_add(0, e - 1))
        if e >= 2 and e % 2 == 0: sm0.append(sm_cvt(0, e // 2 - 1))
    sm0.append(sm_cvt(0, 3))
    spread(G, sm0, blk[7] + 6, blk[7] + 30)
    spread(G, conv_unit(7, 0) + conv_unit(7, 1) + conv_unit(7, 2) + conv_unit(7, 3), blk[7] + 31 + 5, E[3] + 1)
    if OPT.get("diag"):
        G.va[blk[7]] += mk(f"s_lshl_b32 s3, s{sWAVE}, 10\ns_add_u32 s3, s3, {FLAG + 20480}\nv_mov_b32 v111, s3")
    G.va[hook] += mk(f"s_cmp_lt_u32 s{sINI}, {BIG}\ns_cbranch_scc1 L_announce\nL_annback:\ns_cmp_eq_u32 s{sMODE}, 2\ns_cbranch_scc1 L_mgload\nL_mgback:")
    out = autonop(G.emit())
    out += mk(f"s_cmp_eq_u32 s{sMODE}, 1\ns_cbranch_scc1 L_maxpass")
    est = sum(16 + G.cost(g) for g in range(blk[0], E[4]))
    print("tail est cycles blk0..ep0 end:", est, "mfma", E[4] - blk[0])
    i = [n for n, x in enumerate(out) if x.text == "L_mgback:"][0]
    return out[:i], out[i:]


def build(opts):
    OPT.clear(); OPT.update(opts)
    for k in POL:
        if k in opts: POL[k] = opts[k].replace("+", " ").replace("-", "")
    ts = opts.get("ts", False)
    L = int(opts.get("la", 3))
    pg = Prog()
    T = "main"

    def stamp(i):
        return mk(f"s_memtime s[{sTS+2*i}:{sTS+2*i+1}]") if ts else []
    entry = f"""
s_cmp_ge_u32 s2, 256
s_cbranch_scc1 L_end
{"s_memtime s[66:67]" if ts else ""}
{"s_memrealtime s[68:69]" if ts else ""}
v_lshrrev_b32 v1, 6, v0
v_and_b32 v0, 63, v0
v_readfirstlane_b32 s{sWAVE}, v1
s_mov_b32 s{sMODE}, 0
s_mov_b32 s{sSIG}, 0
L_start:
"""
    init = f"""
s_bfe_u32 s{sT0}, s2, 0x10002             ; branch
s_mul_i32 s3, s{sT0}, 40
s_add_u32 s{sARG}, s0, s3
s_addc_u32 s{sARG+1}, s1, 0
s_load_dwordx8 s[56:63], s[{sARG}:{sARG+1}], 0     ; x, K, V, wq
s_load_dwordx2 s[64:65], s[0:1], 96                ; ws
s_load_dwordx2 s[34:35], s[{sARG}:{sARG+1}], 32    ; wo
s_load_dwordx2 s[{sOUTP}:{sOUTP+1}], s[0:1], 80
s_load_dwordx2 s[{sDBG}:{sDBG+1}], s[0:1], 88
s_and_b32 s{sT1}, s2, 3
s_lshl_b32 s{sT1}, s{sT1}, 2
s_bfe_u32 s{sT2}, s2, 0x20003
s_add_u32 s{sT1}, s{sT1}, s{sT2}
s_lshr_b32 s{sT2}, s2, 5                  ; batch
v_lshrrev_b32 v1, 2, v0
v_and_b32 v2, 3, v0
v_lshrrev_b32 v3, 4, v0
v_lshlrev_b32 v4, 1, v3
v_and_b32 v4, 2, v4
v_lshrrev_b32 v5, 1, v3
v_mul_u32_u24 v5, 3, v5
v_xor_b32 v4, v4, v5
v_xor_b32 v4, v4, v2
v_lshlrev_b32 v4, 4, v4
v_lshl_add_u32 v4, v1, 10, v4
s_lshl_b32 s3, s{sWAVE}, 16
v_add_u32 v{XV(0)}, s3, v4
v_add_u32 v{XV(1)}, {15360}, v{XV(0)}
v_add_u32 v{XV(2)}, {2*15360}, v{XV(0)}
v_add_u32 v{XV(3)}, {3*15360}, v{XV(0)}
v_lshrrev_b32 v4, 5, v0
v_and_b32 v5, 31, v0
s_and_b32 s3, s{sWAVE}, 1
s_lshl_b32 s3, s3, 3
v_lshl_or_b32 v6, v4, 1, s3
v_xor_b32 v5, v5, v6
v_lshlrev_b32 v5, 4, v5
v_lshl_add_u32 v5, v4, 13, v5
s_lshl_b32 s3, s{sWAVE}, 16
v_add_u32 v{WV(0)}, s3, v5
v_xor_b32 v6, 64, v{WV(0)}
v_add_u32 v{WV(1)}, {15360}, v6
v_add_u32 v{WV(2)}, {2*15360}, v{WV(0)}
v_add_u32 v{WV(3)}, {3*15360}, v6
s_lshl_b32 s{sKVL}, s{sWAVE}, 11
s_lshl_b32 s{sSTL}, s{sWAVE}, 12
s_mov_b32 s{sXOFF}, 0
s_lshl_b32 s{sWOFF}, s{sT1}, 9
s_and_b32 s3, s{sT2}, {int(opts.get("rot1", 3))}
s_lshl_b32 s{sROTX}, s3, 7
s_lshl_b32 s{sROTW}, s3, 19
s_mov_b32 s{sXX}, s{sROTX}
s_xor_b32 s{sWX}, s{sWOFF}, s{sROTW}
s_mul_i32 s3, s{sT2}, 245760
s_waitcnt lgkmcnt(0)
s_add_u32 s{sX}, s56, s3
s_addc_u32 s{sX+1}, s57, 0
s_mov_b32 s{sX+2}, 245760
s_mov_b32 s{sX+3}, 0x20000
s_mov_b32 s{sW}, s62
s_mov_b32 s{sW+1}, s63
s_mov_b32 s{sW+2}, 0x400000
s_mov_b32 s{sW+3}, 0x20000
"""

    def issue(items):
        r = []
        for pre, d, post in items:
            r += pre + ([I("s_nop 0")] if pre else []) + [d] + post
        return r
    seq = mk(init) + stamp(0) + issue(stage_items(0))
    pfmask = f"v_lshrrev_b32 v1, 3, v0\nv_lshl_add_u32 v{PFV}, v1, 23, v{PFV}" if opts.get("pfph", "t") == "t" else ""
    rest = f"""
s_lshl_b32 s3, s{sT2}, 4
s_add_u32 s3, s3, s{sT1}
s_lshl_b32 s3, s3, 19
{"s_and_b32 s3, s3, 0x180000" if opts.get("kvl2") else ""}
s_add_u32 s{sK}, s58, s3
s_addc_u32 s{sK+1}, s59, 0
s_mov_b32 s{sK+2}, 0x80000
s_mov_b32 s{sK+3}, 0x20000
s_add_u32 s{sV}, s60, s3
s_addc_u32 s{sV+1}, s61, 0
s_mov_b32 s{sV+2}, 0x80000
s_mov_b32 s{sV+3}, 0x20000
s_mul_i32 s3, s{sT0}, {OWS_BRANCH}
s_add_u32 s{sO}, s64, s3
s_addc_u32 s{sO+1}, s65, 0
s_and_b32 s3, s{sSIG}, 1
s_cselect_b32 s{sO+2}, 0, {OWS_BRANCH}
s_mov_b32 s{sO+3}, 0x20000
s_mov_b32 s{sPF}, s34
s_mov_b32 s{sPF+1}, s35
s_mov_b32 s{sPF+2}, 0x400000
s_mov_b32 s{sPF+3}, 0x20000
s_add_u32 s{sMG}, s64, {MGWS}
s_addc_u32 s{sMG+1}, s65, 0
s_mov_b32 s{sMG+2}, 0x400000
s_mov_b32 s{sMG+3}, 0x20000
s_mul_i32 s3, s{sT2}, 15
s_lshl_b32 s{sT3}, s{sWAVE}, 2
s_add_u32 s3, s3, s{sT3}
s_lshl_b32 s3, s3, 12
s_mul_i32 s{sT3}, s{sT1}, {2*120*4096}
s_add_u32 s{sOOFF}, s3, s{sT3}
s_mov_b32 s{sKOFF}, s{sKVL}
s_mov_b32 s{sVOFF}, s{sKVL}
s_lshr_b32 s3, s2, 3
s_lshl_b32 s{sROT}, s2, 2
s_xor_b32 s3, s3, s{sROT}
s_and_b32 s3, s3, {31 if not opts.get("norot") else 0}
s_lshl_b32 s{sROT}, s3, 13
s_xor_b32 s{sKX}, s{sKOFF}, s{sROT}
s_xor_b32 s{sVX}, s{sVOFF}, s{sROT}
s_mov_b32 s{sC}, {f2u(QSCALE):#x}
s_mov_b32 s{sBAD}, 0
s_mov_b32 s{sTH}, {f2u(LTHRESH):#x}
s_mov_b32 s{sCNT}, 0
s_mov_b32 s{sRD}, {idx(0)*16384}
s_add_u32 s{sDMA}, s{sSTL}, {idx(L-1)*16384}
s_and_b32 s3, s2, 3
s_lshr_b32 s{sT3}, s2, 3
s_lshl_b32 s3, s3, 5
s_add_u32 s3, s3, s{sT3}
s_lshl_b32 s3, s3, 15
s_lshl_b32 s{sT3}, s{sWAVE}, 13
s_add_u32 s3, s3, s{sT3}
v_lshl_add_u32 v{PFV}, v0, 7, s3
{pfmask}
s_lshl_b32 s3, s{sT0}, 3
s_add_u32 s{sOWN}, s3, s{sT2}
s_lshl_b32 s{sOWN}, s{sOWN}, 9
s_add_u32 s{sOWN}, s{sOWN}, {FLW}
s_cmp_eq_u32 s{sWAVE}, 0
s_cselect_b32 s{sOWN}, s{sOWN}, {BIG}
s_and_b32 s{sT3}, s{sSIG}, 4
s_or_b32 s{sT3}, s{sT3}, s{sT1}
s_cselect_b32 s{sINI}, {BIG}, s{sOWN}
s_or_b32 s{sSIG}, s{sSIG}, 4
s_and_b32 s{sT1}, s2, 3
s_lshl_b32 s{sT1}, s{sT1}, 1
s_lshr_b32 s{sT3}, s2, 7
s_add_u32 s{sT1}, s{sT1}, s{sT3}
s_add_u32 s{sCTR}, s3, s{sT1}
s_lshl_b32 s{sCTR}, s{sCTR}, 9
s_add_u32 s{sCTR}, s{sCTR}, {FLW}
s_cmp_eq_u32 s{sWAVE}, 0
s_cselect_b32 s{sCTR}, s{sCTR}, {BIG}
s_cselect_b32 s{sNEED}, 16, 0
s_bfe_u32 s{sT2}, s2, 0x10006             ; m half
s_bfe_u32 s{sT3}, s2, 0x30003             ; n tile
s_mul_i32 s{sT1}, s{sT1}, 15
s_lshl_b32 s3, s{sT2}, 3
s_add_u32 s{sT1}, s{sT1}, s3
s_lshl_b32 s3, s{sWAVE}, 1
s_add_u32 s{sT1}, s{sT1}, s3
s_lshl_b32 s{sOB}, s{sT1}, 12
s_lshl_b32 s{sWB}, s{sWAVE}, 15
s_lshl_b32 s3, s{sT3}, 7
s_add_u32 s{sWB}, s{sWB}, s3
s_lshl_b32 s{sDOFF}, s{sT1}, 15
s_add_u32 s{sDOFF}, s{sDOFF}, s3
s_lshl_b32 s3, s{sT0}, 10
s_add_u32 s{sDOFF}, s{sDOFF}, s3
s_add_u32 s{sDOFF1}, s{sDOFF}, 32768
s_lshr_b32 s3, s2, 6
s_lshl_b32 s3, s3, 1
s_add_u32 s3, s3, s{sT3}
s_and_b32 s{sMASK}, s3, {int(opts.get("stag", 3))}
s_lshl_b32 s3, s{sT2}, 2
s_add_u32 s3, s3, s{sWAVE}
s_cmp_eq_u32 s3, 7
s_cselect_b32 s{sDOFF1}, 0x40000000, s{sDOFF1}
s_mov_b32 s{sSPIN}, 4096
s_cselect_b32 s{sSPIN}, 0x40000000, s{sSPIN}
v_lshlrev_b32 v{OVOFF}, 4, v0
v_and_b32 v1, 15, v0
v_lshrrev_b32 v2, 4, v0
s_lshl_b32 s3, s{sWAVE}, 3
s_and_b32 s3, s3, 15
v_add_u32 v3, s3, v2
v_xor_b32 v4, v1, v3
v_lshlrev_b32 v4, 4, v4
v_lshl_add_u32 v{KV0}, v2, 8, v4
v_xor_b32 v{KV1}, 64, v{KV0}
v_lshlrev_b32 v3, 1, v2
v_xor_b32 v4, v1, v3
v_lshlrev_b32 v4, 4, v4
v_lshl_add_u32 v{VV0}, v2, 8, v4
v_xor_b32 v{VV1}, 0x80, v{VV0}
v_lshrrev_b32 v3, 2, v1
v_lshlrev_b32 v4, 1, v3
v_and_b32 v4, 2, v4
v_lshrrev_b32 v5, 1, v3
v_mul_u32_u24 v5, 3, v5
v_xor_b32 v4, v4, v5
v_xor_b32 v4, v4, v2
v_lshlrev_b32 v4, 4, v4
v_lshl_add_u32 v4, v1, 6, v4
s_add_u32 s3, s{sSTL}, {idx(0)*16384}
v_add_u32 v{XA}, s3, v4
v_bfe_u32 v3, v0, 2, 2
v_and_b32 v4, 3, v0
v_and_b32 v5, 1, v2
v_lshl_or_b32 v5, v5, 2, v3
v_lshl_add_u32 v6, v2, 3, v3
v_lshlrev_b32 v6, 9, v6
v_lshl_add_u32 v6, v5, 5, v6
v_lshl_add_u32 v6, v4, 3, v6
v_add_u32 v{AA(0)}, {WOFFL + idx(0)*16384}, v6
"""
    seq += mk(rest)
    seq += mk([f"v_xor_b32 v{AA(u)}, {u<<5}, v{AA(0)}" for u in range(1, 8)])
    if not opts.get("nopfcode"):
        seq += mk(f"""s_getpc_b64 s[88:89]
L_pc:
s_sub_u32 s88, s88, L_pc-{KNAME}
s_subb_u32 s89, s89, 0
s_lshl_b32 s3, s{sWAVE}, 13
v_lshl_add_u32 v1, v0, 7, s3
v_min_u32 v1, L_codeend-{KNAME}-4, v1
v_add_u32 v2, 0x8000, v1
v_min_u32 v2, L_codeend-{KNAME}-4, v2""")
        seq += [I(f"global_load_dword v{DUMMY}, v1, s[88:89]", tag="PFC"), I(f"global_load_dword v3, v2, s[88:89]", tag="PFC")]
    seq += mk(f"v_lshl_add_u32 v4, v0, 22, s{sINI}\nv_mov_b32 v5, 0")
    seq += [I(f"buffer_store_dword v5, v4, {srd(sMG)}, 0 offen sc1", tag="INI"), I(f"buffer_store_dword v5, v4, {srd(sMG)}, 0 offen offset:256 sc1", tag="INI")]
    seq += mk([f"v_mov_b32 v{i}, 0" for i in range(32, 256)])
    seq += mk([f"v_accvgpr_write_b32 a{i}, 0" for i in range(224, 256)])
    for st in range(1, L - 1):
        seq += issue(stage_items(st))
    if OPT.get("diag1"):
        seq += mk(f"""s_add_u32 s88, s64, {1<<27}
s_addc_u32 s89, s65, 0
s_mov_b32 s90, 0x100000
s_mov_b32 s91, 0x20000
s_lshl_b32 s3, s2, 10
s_lshl_b32 s{sT0}, s{sWAVE}, 8
s_add_u32 s3, s3, s{sT0}
s_add_u32 s3, s3, 0xc0000
v_mov_b32 v1, s3""")
    seq += [WAIT(vm=["S0"]), I("s_barrier")]
    seq += [rd_x(0, m) for m in range(4)]
    for T_ in range(8):
        seq += [rd_a(0, T_, 0), rd_a(0, T_, 1)]
    seq += issue(stage_items(L - 1)[:5])
    seq += stamp(1) + [WAIT(lgkm=0 if ts else "auto")]

    def front(tr, upto_ep0=True, mgload=False):
        pg.visit(tr, "init", autonop(copy_seq(seq)))
        pg.visit(tr, "lbl_p1", mk(".p2align 3\nL_p1loop:"))
        for kk in range(8):
            Z = Seq()
            add_step(Z, kk, L=L, loop_end=(4 if kk & 1 else None))
            o = mkgaps(Z).emit()
            if kk & 1:
                o += mk("s_cbranch_scc1 L_p1loop")
            pg.visit(tr, f"p1_{kk & 1}", o)
        dq = [(0, it) for it in stage_items(7 + L)[5:]]
        for st in range(8 + L, 16):
            dq += [(st - 5, it) for it in stage_items(st)]
        t1, t2 = tail_region(dq)
        pg.visit(tr, "tail1", t1)
        if mgload:
            pg.visit(tr, "mgload", mgload_seg())
        pg.visit(tr, "tail2", t2)

    def copy_seq(sq):
        return [I(x.text, **x.kw) for x in sq]

    def loop(tr, s0):
        pg.visit(tr, "lbl_loop", mk(".p2align 3\nL_loop:"))
        for s in range(1, 31):
            ph = s % 8
            ctl = {6: "exit", 0: 8}.get(ph, ph)
            pg.visit(tr, f"ep_{ph}", epoch(s0 + s, ctl=ctl))
            if isinstance(ctl, int):
                g = s0 + s
                if g >= 55:
                    pg.visit(tr, f"late_{ctl}", late_block(ctl, g))
                elif g >= 47 and OPT.get("early", "0") == "1":
                    pg.visit(tr, f"early_{ctl}", late_block(ctl, g))
                else:
                    pg.visit(tr, f"nl_{ctl}", [WAIT(vm=[f"K{g+3}", f"V{g+2}"]), I("s_barrier")])
                pg.visit(tr, f"lb_{ctl}", mk(f"L_lateback{ctl}:" + ("\ns_branch L_loop" if ctl == 8 else "")))
        pg.visit(tr, "exit", mk(f"L_exit:\ns_cmp_eq_u32 s{sCNT}, 8\ns_cbranch_scc1 L_final"))

    def body(tr, spins=False):
        loop(tr, 0)
        pg.visit(tr, "boundary", boundary(31))
        loop(tr, 32)
        f1, f2 = final(63)
        pg.visit(tr, "final1", mk("L_final:") + (mk(f"s_memtime s[{sTS+8}:{sTS+9}]") if ts else []) + f1)
        if spins:
            pg.visit(tr, "spin0", spin(0, "L_spin0", "L_spin0b"))
        pg.visit(tr, "final2", f2)
        lbl = mk("L_oproj:")
        if OPT.get("diag2"):
            lbl += mk(f"s_lshl_b32 s3, s{sWAVE}, 8\ns_add_u32 s3, s3, {FLAG1 + 1024}\nv_mov_b32 v12, s3")
        pg.visit(tr, "lbl_o", lbl)
        for st in range(32):
            lp = 4 <= st < 28
            if st == 4:
                pg.visit(tr, "lbl_o2", mk(".p2align 3\nL_oloop:"))
            h, t = stage2(st, loop=lp)
            nm = f"o_{st % 4}" if lp else f"o_p{st}"
            if h:
                pg.visit(tr, nm + "h", h)
                if spins and st == 13:
                    pg.visit(tr, "spin1", spin(1, "L_spin1", "L_spin1b"))
            pg.visit(tr, nm, t)
            if lp and st % 4 == 3:
                if st == 7 and spins:
                    pg.visit(tr, "signal1", mk("L_signal1:") + autonop(signal(1)) + mk(f"v_lshl_add_u32 v{POLLA}, v0, 22, s{sCTR}\ns_branch L_oloop"))
                else:
                    pg.visit(tr, "o_back", mk(f"s_cmp_lt_u32 s{sCNT}, 6\ns_cbranch_scc1 L_oloop"))
        pg.visit(tr, "ostore", out_store() + mk("s_branch L_done"))

    def mgload_seg():
        o = mk(f"L_mgload:\ns_lshl_b32 s3, s2, 13\ns_add_u32 s3, s3, s{sKVL}")
        o += [I(f"buffer_load_dword v{MG(hh,q)}, v{OVOFF}, {srd(sMG)}, s3 offen offset:{hh*1024 + q*4} sc1") for hh in range(2) for q in range(4)]
        o += mk("s_waitcnt vmcnt(0)\ns_branch L_mgback")
        return o

    def maxpass():
        o = mk(f"""L_maxpass:
s_waitcnt vmcnt(0) lgkmcnt(0)
s_barrier
s_mov_b32 s{sKOFF}, s{sKVL}
s_xor_b32 s{sKX}, s{sKOFF}, s{sROT}""")
        for hh in range(2):
            o += mk(f"s_mov_b32 s{sCNT}, 0\nL_maxloop{hh}:")
            d = dma_k(64 + 8 * hh)
            o += [d[0], I("s_nop 0")] + d[1:] + mk("s_waitcnt vmcnt(0)\ns_barrier")
            o += [rd_k(64 + 8 * hh, kt, j) for kt in range(2) for j in range(4)] + mk("s_waitcnt lgkmcnt(0)\ns_barrier")
            for qt in range(4):
                o += mk(qk_chain(0, qt, 0, True, hh) + qk_chain(0, qt, 1, True, hh))
            o += mk("s_nop 7")
            for qt in range(4):
                o += mk([f"v_max3_f32 v{MG(hh,qt)}, v{MG(hh,qt)}, v{S(qt,2*i)}, v{S(qt,2*i+1)}" for i in range(4)])
            o += mk(f"s_add_u32 s{sCNT}, s{sCNT}, 1\ns_cmp_lt_u32 s{sCNT}, 32\ns_cbranch_scc1 L_maxloop{hh}")
        o += mk(f"s_lshl_b32 s3, s2, 13\ns_add_u32 s3, s3, s{sKVL}")
        o += [I(f"buffer_store_dword v{MG(hh,q)}, v{OVOFF}, {srd(sMG)}, s3 offen offset:{hh*1024 + q*4} sc1") for hh in range(2) for q in range(4)]
        o += mk(f"s_mov_b32 s{sMODE}, 2\ns_waitcnt vmcnt(0) lgkmcnt(0)\ns_barrier\ns_branch L_start")
        return o

    pg.visit(T, "entry", autonop(mk(entry)))
    front(T)
    body(T)
    pg.visit(T, "restart", mk(RESTART))
    front(T)
    pg.visit(T, "maxpass", maxpass())
    front(T, mgload=True)
    body(T, spins=True)
    pg.visit("x", "spin2", spin(2, "L_spin2", "L_spin2b"))
    pg.visit("x", "announce", announce())
    end = mk("L_done:")
    if ts:
        end += mk(f"""s_memtime s[{sTS}:{sTS+1}]
s_memrealtime s[{sTS+10}:{sTS+11}]
s_waitcnt lgkmcnt(0)
s_add_u32 s{sK}, s64, {1<<27}
s_addc_u32 s{sK+1}, s65, 0
s_mov_b32 s{sK+2}, 0x100000
s_mov_b32 s{sK+3}, 0x20000
v_mov_b32 v32, s{sTS}
v_mov_b32 v33, s{sTS+2}
v_mov_b32 v34, s{sTS+4}
v_mov_b32 v35, s{sTS+6}
v_mov_b32 v36, s{sTS+8}
v_mov_b32 v37, s{sTS+10}
v_mov_b32 v38, s66
v_mov_b32 v39, s68
s_lshl_b32 s3, s2, 7
s_lshl_b32 s{sT0}, s{sWAVE}, 5
s_add_u32 s3, s3, s{sT0}
v_mov_b32 v40, s3
buffer_store_dwordx4 v[32:35], v40, {srd(sK)}, 0 offen
buffer_store_dwordx4 v[36:39], v40, {srd(sK)}, 0 offen offset:16""")
    if OPT.get("diag2"):
        end += mk(f"""s_lshl_b32 s3, s{sWAVE}, 8
s_add_u32 s3, s3, {FLAG1 + 1024}
v_lshl_add_u32 v40, v0, 2, s3
ds_read_b32 v42, v40
s_lshl_b32 s3, s2, 10
s_lshl_b32 s{sT0}, s{sWAVE}, 8
s_add_u32 s3, s3, s{sT0}
s_add_u32 s3, s3, 0xc0000
v_lshl_add_u32 v41, v0, 2, s3
s_waitcnt lgkmcnt(0)
buffer_store_dword v42, v41, {srd(sK)}, 0 offen""")
    end += mk("L_end:\ns_endpgm")
    pg.visit("end", "end", end)
    pg.resolve()
    errs = pg.check()
    return pg.text(), errs
```

```python
import struct
from asmlib import *

R = 8
KBASE, VBASE = 0, 65536
WOFFL = 81920
FLAG = 131072
OWS_BRANCH = 120 * 128 * 1024
MGWS = 32 << 20
QSCALE = 1.4426950408889634 / (128 ** 0.5)
LTHRESH = float(2 ** 30)
POL = {"x": "", "wq": "", "ost": "sc1", "kv": "nt"}
OPT = {}
KNAME = 'concat_heads__mha_block_cached__gqa_block_cached__near_ridge_kernel'
FLW = 2 << 20
BIG = 0x40000000
FLAG1 = 57344


def f2u(f):
    return struct.unpack("<I", struct.pack("<f", f))[0]


sK, sV, sX, sW, sO, sPF, sMG = 4, 8, 12, 16, 20, 92, 96
sWAVE, sKOFF, sVOFF, sXOFF, sWOFF = 24, 25, 26, 27, 28
sKVL, sSTL = 29, 30
sRD, sDMA, sDELTA = 31, 32, 33
sCNT, sUNUSED, sMODE, sOOFF, sT0, sT1, sT2, sT3 = 36, 37, 38, 39, 40, 41, 42, 43
sARG = 44
sC, sTH, sROT, sBAD = 46, 48, 49, 47
sKX, sVX, sXX, sWX, sROTX, sROTW = 50, 51, 52, 53, 54, 55
sOUTP, sDBG, sD = 82, 84, 12
sOB, sWB, sOX, sWX2, sSTG, sMASK, sREQ, sDOFF, sDOFF1, sCTR, sSIG, sOWN, sSPIN = 56, 57, 58, 59, 60, 61, 62, 63, 34, 35, 37, 100, 101
sINI, sNEED, sPFO, sM3 = 90, 91, 27, 28
sTS = 70
srd = lambda b: f"s[{b}:{b+3}]"

AA = lambda u: 8 + u
XA = 16
XV = lambda qt: 17 + qt
WV = lambda i: 21 + i
KV0, KV1, VV0, VV1 = 25, 26, 27, 28
OVOFF, PFV, DUMMY = 29, 30, 31
KA = lambda j: 17 + j
VA = lambda t: 8 + t
S = lambda qt, e: 32 + qt * 8 + e
P = lambda qt: 64 + qt * 4
NM = lambda qt: 80 + qt * 4
LS = {1: 96, 3: 100}
ONES = 104
MG = lambda hh, qt: (108 if hh == 0 else 21) + qt
LV = {0: 112, 2: 113}
RC = lambda qt: 114 + qt
MT = (118, 119)
PK = lambda i: 120 + 4 * (i & 1)
O = lambda qt, t: 128 + (qt * 8 + t) * 4
KF = lambda par, kt, j: par * 32 + (kt * 4 + j) * 4
VF = lambda par, t: 64 + par * 32 + t * 4
Q = lambda hh, qt, j: 128 + hh * 64 + (qt * 4 + j) * 4
AF = lambda T: 128 + T * 4
XF = lambda par, qt: 192 + par * 16 + qt * 4
XP = lambda ks, qt: 64 + (ks * 4 + qt) * 4
PF = lambda p, ti, ks: ((p & 1) ^ 1) * 32 + (ti * 4 + ks) * 4
K0F = lambda kt, j: 128 + (kt * 4 + j) * 4
ACCB = {1: 128, 2: 32, 3: 64, 4: 96, 5: 160, 6: 192, 7: 224}


def ACC(T, qt):
    p = T >> 1
    i = ((T & 1) * 4 + qt) * 4
    return ("a", 224 + i) if p == 0 else ("v", ACCB[p] + i)


def rr(k, b, n=4):
    return f"{k}[{b}:{b+n-1}]"


MF = "v_mfma_f32_16x16x32_bf16"
idx = lambda st: (st + 4) % 5


class Seq:
    def __init__(self):
        self.mf = []
        self.puts = []

    def base(self):
        return len(self.mf)

    def put(self, g, x):
        self.puts.append((g, x))

    def gaps(self):
        G = Gaps(self.mf)
        for g, x in self.puts:
            G.put(g, x)
        return G


def unit_alias(kind, slot):
    u = (slot >> 1) + (4 if kind == "V" else 0)
    return [("X", u)] if u < 5 else [("W", u - 5)]


def dma_k(tile):
    slot = tile % R
    wr = ([("K", slot)] + unit_alias("K", slot), f"K{tile}")
    p = POL["kv"]
    return [I(f"s_add_u32 m0, s{sKVL}, {KBASE + slot*8192}"),
            I(f"buffer_load_dwordx4 v{KV0}, {srd(sK)}, s{sKX} offen {p} lds", tag=f"K{tile}", wr=wr),
            I(f"buffer_load_dwordx4 v{KV1}, {srd(sK)}, s{sKX} offen offset:1024 {p} lds", tag=f"K{tile}", wr=wr),
            I(f"s_add_u32 s{sKOFF}, s{sKOFF}, 8192"), I(f"s_xor_b32 s{sKX}, s{sKOFF}, s{sROT}")]


def dma_v(tile):
    slot = tile % R
    wr = ([("V", slot)] + unit_alias("V", slot), f"V{tile}")
    p = POL["kv"]
    return [I(f"s_add_u32 m0, s{sKVL}, {VBASE + slot*8192}"),
            I(f"buffer_load_dwordx4 v{VV0}, {srd(sV)}, s{sVX} offen {p} lds", tag=f"V{tile}", wr=wr),
            I(f"buffer_load_dwordx4 v{VV1}, {srd(sV)}, s{sVX} offen offset:1024 {p} lds", tag=f"V{tile}", wr=wr),
            I(f"s_add_u32 s{sVOFF}, s{sVOFF}, 8192"), I(f"s_xor_b32 s{sVX}, s{sVOFF}, s{sROT}")]


def rd_k(tile, kt, j, dst=None):
    slot = tile % R
    d = dst or rr('a', KF(tile & 1, kt, j))
    return I(f"ds_read_b128 {d}, v{KA(j)} offset:{slot*8192 + kt*4096}", rd=(("K", slot), f"K{tile}"))


def rd_v(tile, t, sec):
    slot = tile % R
    return I(f"ds_read_b64_tr_b16 {rr('a', VF(tile & 1, t) + 2*sec, 2)}, v{VA(t)} offset:{slot*8192 + sec*4096}", rd=(("V", slot), f"V{tile}"))


def kv_alias(u):
    return [("K", 2 * u), ("K", 2 * u + 1)] if u < 4 else ([("V", 2 * (u - 4)), ("V", 2 * (u - 4) + 1)] if u < 8 else [])


def st_dma_w(st, i):
    return I(f"buffer_load_dwordx4 v{WV(i)}, {srd(sW)}, s{sWX} offen offset:{i*1024} {POL['wq']} lds", tag=f"S{st}",
             wr=([("W", idx(st))] + kv_alias(idx(st) + 5), f"S{st}"))


def st_dma_x(st, qt):
    return I(f"buffer_load_dwordx4 v{XV(qt)}, {srd(sX)}, s{sXX} offen offset:{qt*1024} {POL['x']} lds", tag=f"S{st}",
             wr=([("X", idx(st))] + kv_alias(idx(st)), f"S{st}"))


W_ADV = lambda: mk(f"s_add_u32 s{sWOFF}, s{sWOFF}, 262144\ns_xor_b32 s{sWX}, s{sWOFF}, s{sROTW}")
X_ADV = lambda: mk(f"s_add_u32 s{sXOFF}, s{sXOFF}, 64\ns_xor_b32 s{sXX}, s{sXOFF}, s{sROTX}")


def stage_items(st):
    r = []
    for i in range(4):
        r.append(([I(f"s_add_u32 m0, s{sSTL}, {WOFFL + idx(st)*16384}")] if i == 0 else [], st_dma_w(st, i), W_ADV() if i == 3 else []))
    for q in range(4):
        r.append(([I(f"s_add_u32 m0, s{sSTL}, {idx(st)*16384}")] if q == 0 else [], st_dma_x(st, q), X_ADV() if q == 3 else []))
    return r


def rd_a(st, T, sec, dst=None, off=0):
    d = dst if dst is not None else AF(T)
    return I(f"ds_read_b64_tr_b16 {rr('a', d + 2*sec, 2)}, v{AA(T & 7)} offset:{off + sec*2048 + (T >> 3)*256}", rd=(("W", idx(st)), f"S{st}"))


def rd_x(st, qt, dst=None, off=0):
    d = dst if dst is not None else XF(st & 1, qt)
    return I(f"ds_read_b128 {rr('a', d)}, v{XA} offset:{off + qt*1024}", rd=(("X", idx(st)), f"S{st}"))


def add_step(Z, kk, L=None, dq=None, loop_end=None, second=True, vmneed=None):
    b = Z.base()
    for T in range(16):
        for qt in range(4):
            k, a = ACC(T, qt)
            Z.mf.append(f"{MF} {rr(k, a)}, {rr('a', AF(T))}, {rr('a', XF(kk & 1, qt))}, {rr(k, a)}")
    for T in range(8, 16):
        g = (T - 8) // 2 * 6 + (T & 1) * 2
        Z.put(b + g, rd_a(kk, T, 0)); Z.put(b + g + 1, rd_a(kk, T, 1))
    Z.put(b + 19, f"s_add_u32 s{sT0}, s{sRD}, 16384")
    Z.put(b + 20, f"s_cmp_eq_u32 s{sT0}, {5*16384}")
    Z.put(b + 21, f"s_cselect_b32 s{sT0}, 0, s{sT0}")
    Z.put(b + 22, f"s_sub_u32 s{sDELTA}, s{sT0}, s{sRD}")
    Z.put(b + 23, f"s_mov_b32 s{sRD}, s{sT0}")
    for u in range(8):
        Z.put(b + 23 + u // 2, f"v_add_u32 v{AA(u)}, s{sDELTA}, v{AA(u)}")
    Z.put(b + 27, f"v_add_u32 v{XA}, s{sDELTA}, v{XA}")
    Z.put(b + 30, WAIT(lgkm=0, vm=vmneed or [f"S{kk+1}"]))
    Z.put(b + 31, "s_barrier")
    Z.put(b + 11, WAIT(lgkm="auto"))
    if second:
        order = [("x", 0), ("x", 1), ("a", 0), ("a", 1), ("x", 2), ("x", 3)] + [("a", T) for T in range(2, 8)]
        slots = [32, 33, 34, 35, 36, 38, 40, 41, 42, 43, 44, 46, 48, 49, 50, 51, 52, 54, 56, 57]
        for kind, v in order:
            if kind == "x":
                Z.put(b + slots.pop(0), rd_x(kk + 1, v))
            else:
                Z.put(b + slots.pop(0), rd_a(kk + 1, v, 0)); Z.put(b + slots.pop(0), rd_a(kk + 1, v, 1))
        Z.put(b + 62, WAIT(lgkm="auto"))
    if L is not None:
        for g, qt in ((4, 1), (10, 2), (16, 3)):
            Z.put(b + g, st_dma_x(kk - 1 + L, qt))
        xa = X_ADV(); Z.put(b + 17, xa[0]); Z.put(b + 18, xa[1])
        Z.put(b + 24, f"s_add_u32 s{sDMA}, s{sDMA}, 16384")
        Z.put(b + 25, f"s_cmp_ge_u32 s{sDMA}, {5*16384}")
        Z.put(b + 26, f"s_cselect_b32 s{sDMA}, s{sSTL}, s{sDMA}")
        Z.put(b + 36, f"s_add_u32 m0, s{sDMA}, {WOFFL}")
        for n, g in enumerate((37, 45, 47, 53)):
            Z.put(b + g, st_dma_w(kk + L, n))
        wa = W_ADV(); Z.put(b + 54, wa[0]); Z.put(b + 56, wa[1])
        Z.put(b + 55, f"s_mov_b32 m0, s{sDMA}")
        Z.put(b + 60, st_dma_x(kk + L, 0))
    if dq is not None:
        f1 = [4, 5, 10, 16, 17, 22, 28]
        f2 = [37, 39, 45, 47, 53, 55, 59] if second else []
        if OPT.get("unr1"):
            n = int(OPT["unr1"])
            f1 = [4, 10, 16, 22, 28][:n // 2]
            f2 = [37, 45, 53, 59, 47, 39][:n - n // 2] if second else []
            f2.sort()
        for free, bar in ((f1, kk - 1), (f2, kk)):
            for g in free:
                if not dq or dq[0][0] > bar:
                    break
                _, (pre, d, post) = dq.pop(0)
                Z.put(b + g - 1, ("late", pre)); Z.put(b + g, d); Z.put(b + g, ("late", post))
    if OPT.get("diag1"):
        Z.put(b + 0, "s_memtime s[86:87]")
        Z.put(b + 28, "v_mov_b32 v2, s86"); Z.put(b + 29, "global_store_dword v1, v2, s[64:65]"); Z.put(b + 30, "v_add_u32 v1, 4, v1")
    if loop_end:
        Z.put(b + 58, f"s_add_u32 s{sCNT}, s{sCNT}, 1")
        Z.put(b + 63, f"s_cmp_lt_u32 s{sCNT}, {loop_end}")
    return b


def mkgaps(Z):
    G = Gaps(Z.mf)
    for g, x in Z.puts:
        if isinstance(x, tuple) and x and x[0] == "late":
            G.va[g] += mk(x[1])
        else:
            G.put(g, x)
    return G


MSUM = (1, 3)


def qk_chain(tile, qt, kt, czero=False, hh=0, kf=None):
    d = S(qt, 4 * kt)
    r = []
    for j in range(4):
        c = ("0" if czero else rr("v", NM(qt))) if j == 0 else rr("v", d)
        a = rr("v", kf(kt, j)) if kf else rr("a", KF(tile & 1, kt, j))
        r.append(f"{MF} {rr('v', d)}, {a}, {rr('a', Q(hh, qt, j))}, {c}")
    return r


def sm_exp(qt, e): return f"v_exp_f32 v{S(qt,e)}, v{S(qt,e)}"
def sm_mul(qt, e): return f"v_mul_f32 v{S(qt,e)}, s{sC}, v{S(qt,e)}"
def sm_ex(qt, e):
    if not OPT.get("fp32s"):
        return [sm_exp(qt, e)]
    return ([sm_mul(qt, 0)] if e == 0 else []) + [sm_exp(qt, e)] + ([sm_mul(qt, e + 1)] if e < 7 else [])
def sm_add(qt, e): return f"v_add_f32 v{LV[qt]}, v{LV[qt]}, v{S(qt,e)}"
def sm_cvt(qt, i): return f"v_cvt_pk_bf16_f32 v{P(qt)+i}, v{S(qt,2*i)}, v{S(qt,2*i+1)}"


def pv_list(s, b, zero):
    pv = []
    for t in range(8):
        o = rr("v", O(b, t))
        pv.append(f"{MF} {o}, {rr('a', VF(s & 1, t))}, {rr('v', P(b))}, {'0' if zero else o}")
    if b in MSUM:
        l = rr("v", LS[b])
        pv.append(f"{MF} {l}, {rr('v', ONES)}, {rr('v', P(b))}, {'0' if zero else l}")
    return pv


def add_epoch(Z, s, hh=0, qk_zero=False, pv_zero=False, ctl=None):
    reads = [rd_k(s + 2, 0, j) for j in range(4)] + [rd_v(s + 1, t, sec) for t in range(8) for sec in range(2)] + [rd_k(s + 2, 1, j) for j in range(4)]
    offs = []
    for b in range(4):
        o = Z.base()
        offs.append(o)
        Z.mf += qk_chain(s + 1, b, 0, qk_zero, hh) + pv_list(s, b, pv_zero) + qk_chain(s + 1, b, 1, qk_zero, hh)
        sq = (b + 1) & 3
        for e in range(8):
            Z.put(o + 2 * e, sm_ex(sq, e))
        if b in (0, 2):
            dsg = [1, 3, 5, 7, 11, 15]
            for i in range(4):
                Z.put(o + 4 * i + 3, sm_cvt(sq, i))
            if b == 0:
                Z.put(o + 1, sm_add(0, 6)); Z.put(o + 5, sm_add(0, 7))
            D = int(OPT.get('dist', R))
            d = dma_k(s + D) if b == 0 else dma_v(s + D - 1)
            Z.put(o + 8, d[0]); Z.put(o + 9, d[1]); Z.put(o + 13, d[2]); Z.put(o + 12, d[3]); Z.put(o + 14, d[4])
        else:
            dsg = [1, 5, 7, 9, 13, 15]
            for gg, e in ((1, 0), (3, 1), (5, 2), (9, 3), (11, 4), (13, 5)):
                Z.put(o + gg, sm_add(sq, e))
            for i in range(4):
                Z.put(o + 4 * i + 3, sm_cvt(sq, i))
            if b == 1:
                if ctl == 1 and OPT.get("pfph", "t") == "t":
                    Z.put(o + 16, I(f"buffer_load_dword v{DUMMY}, v{PFV}, {srd(sPF)}, s{sPFO} offen", tag="PF"))
                    Z.put(o + 17 + 1, sm_add(sq, 6)); Z.put(o + 17 + 5, sm_add(sq, 7))
                    Z.put(o + 17 + 2, f"s_add_u32 s{sPFO}, s{sPFO}, 1024")
                else:
                    Z.put(o + 16, sm_add(sq, 6)); Z.put(o + 16, sm_add(sq, 7))
        for gg in dsg:
            Z.put(o + gg, reads.pop(0))
        if OPT.get("slow"):
            Z.put(o + 6, ("late", f"s_nop {int(OPT['slow']) - 1}"))
        if OPT.get("dmf") and ctl is not None:
            for i in range(int(OPT["dmf"])):
                Z.put(o + 6 + 4 * i, ("late", f"{MF} v[124:127], {rr('a', VF(s & 1, i + b))}, {rr('a', Q(0, b, i))}, v[124:127]"))
        if OPT.get("dva") and ctl is not None:
            for i in range(int(OPT["dva"])):
                Z.put(o + 2 * i, f"v_mul_f32 v{124 + i % 4}, s{sC}, v{S(sq, (i + 1) % 8)}")
        if b == 0:
            Z.put(o + 3, WAIT(lgkm="auto")); Z.put(o + 11, WAIT(lgkm="auto"))
        if b == 3:
            late = isinstance(ctl, int)
            Z.put(o + 15, WAIT(lgkm="auto", vm=None if late else [f"K{s+3}", f"V{s+2}"]))
            if ctl == "exit":
                Z.put(o + 12, f"s_add_u32 s{sCNT}, s{sCNT}, 1"); Z.put(o + 14, f"s_and_b32 s{sT0}, s{sCNT}, 3")
            if isinstance(ctl, int):
                Z.put(o + 14, f"s_cmp_ge_u32 s{sCNT}, {6 if OPT.get('early', '0') == '1' else 7}")
            if late:
                Z.put(o + 16, f"s_cbranch_scc1 L_late{ctl}")
            else:
                Z.put(o + 16, "s_barrier")
        if OPT.get("diag"):
            if b == 0:
                Z.put(o + 0, "s_memtime s[86:87]"); Z.put(o + 1, "s_memrealtime s[88:89]")
            if b == 3:
                Z.put(o + 2, "v_mov_b32 v102, s86"); Z.put(o + 2, "v_mov_b32 v103, s88")
                Z.put(o + 3, "ds_write_b64 v111, v[102:103]"); Z.put(o + 4, "v_add_u32 v111, 8, v111")
    offs.append(Z.base())
    return offs


def epoch(s, ctl=None):
    Z = Seq()
    offs = add_epoch(Z, s, ctl=ctl)
    G = mkgaps(Z)
    if not any(OPT.get(k) for k in ("diag", "slow", "dmf", "dva", "fp32s")):
        assert G.excess() == 0, G.excess()
    out = G.emit()
    if ctl == "exit":
        out += mk("s_cbranch_scc0 L_exit")
    if not OPT.get("w3"):
        return out, [], [], []
    ph = s % 8
    i3 = out.index(G.mf[offs[3]])
    ie = out.index(G.mf[-1]) + 1
    head = out[:i3] + mk(f"s_cbranch_vccnz L_alt{ph}")
    alt = mk(f"L_alt{ph}:") + autonop([I(x.text, **x.kw) for x in out[i3:ie] if x.kind != "mfma"]) + mk(f"s_branch L_altb{ph}")
    return head, out[i3:ie], alt, mk(f"L_altb{ph}:") + out[ie:]


SETVCC = lambda: mk(f"s_cmp_eq_u32 s{sWAVE}, 3\ns_cselect_b64 vcc, 1, 0") if OPT.get("w3") else []


def xred(reg, tmp, op):
    return [f"v_mov_b32 v{tmp}, v{reg}", f"v_permlane16_swap_b32 v{reg}, v{tmp}", f"{op} v{reg}, v{reg}, v{tmp}",
            f"v_mov_b32 v{tmp}, v{reg}", f"v_permlane32_swap_b32 v{reg}, v{tmp}", f"{op} v{reg}, v{reg}, v{tmp}"]


def maxops(hh, qt):
    m, t = MT
    r = [f"v_max3_f32 v{m}, v{S(qt,0)}, v{S(qt,1)}, v{MG(hh,qt)}", f"v_max3_f32 v{t}, v{S(qt,2)}, v{S(qt,3)}, v{S(qt,4)}",
         f"v_max3_f32 v{m}, v{m}, v{S(qt,5)}, v{S(qt,6)}", f"v_max3_f32 v{m}, v{m}, v{t}, v{S(qt,7)}"]
    r += xred(m, t, "v_max_f32")
    r += [f"v_sub_f32 v{S(qt,e)}, v{S(qt,e)}, v{m}" for e in range(8)]
    r += [f"v_sub_f32 v{NM(qt)+i}, 0, v{m}" for i in range(4)]
    return r


def conv_unit(p, qt):
    hh, j = p >> 2, p & 3
    o = []
    (k0, b0), (k1, b1) = ACC(2 * p, qt), ACC(2 * p + 1, qt)
    if k0 == "a":
        o += [f"v_accvgpr_read_b32 v{1+x}, a{b0+x}" for x in range(4)] + [f"v_accvgpr_read_b32 v{21+x}, a{b1+x}" for x in range(4)]
        b0, b1 = 1, 21
    o += [f"v_mul_f32 v{b+x}, s{sC}, v{b+x}" for b in (b0, b1) for x in (0, 1)]
    o += [f"v_cvt_pk_bf16_f32 v{b0}, v{b0}, v{b0+1}", f"v_cvt_pk_bf16_f32 v{b1}, v{b1}, v{b1+1}"]
    o += [f"v_mul_f32 v{b+x}, s{sC}, v{b+x}" for b in (b0, b1) for x in (2, 3)]
    q = Q(hh, qt, j)
    o += [f"v_cvt_pk_bf16_f32 v{b0+2}, v{b0+2}, v{b0+3}", f"v_cvt_pk_bf16_f32 v{b1+2}, v{b1+2}, v{b1+3}",
          f"v_permlane16_swap_b32 v{b0}, v{b1}",
          f"v_accvgpr_write_b32 a{q}, v{b0}", f"v_accvgpr_write_b32 a{q+2}, v{b1}",
          f"v_permlane16_swap_b32 v{b0+2}, v{b1+2}",
          f"v_accvgpr_write_b32 a{q+1}, v{b0+2}", f"v_accvgpr_write_b32 a{q+3}, v{b1+2}"]
    if OPT.get("fp32s"):
        o = [x for x in o if not x.startswith("v_mul")]
    return o


def lfin(qt):
    r = RC(qt)
    if qt in MSUM:
        o = [f"v_cmp_nge_f32 vcc, s{sTH}, v{LS[qt]}", f"v_rcp_f32 v{r}, v{LS[qt]}"]
    else:
        l = LV[qt]
        o = xred(l, r, "v_add_f32") + [f"v_cmp_nge_f32 vcc, s{sTH}, v{l}", f"v_rcp_f32 v{r}, v{l}", f"v_mov_b32 v{l}, 0"]
    return o


def lflag(qt=0):
    if qt == 3:
        return [f"s_or_b32 vcc_lo, vcc_lo, vcc_hi", f"s_and_b32 vcc_lo, vcc_lo, s{sM3}", f"s_or_b32 s{sBAD}, s{sBAD}, vcc_lo"]
    return [f"s_or_b32 s{sBAD}, s{sBAD}, vcc_lo", f"s_or_b32 s{sBAD}, s{sBAD}, vcc_hi"]


PKN = [0]


def st_o(src, qt, u):
    so = sT3 if qt == 3 else (sOOFF, sT1, sT2)[qt]
    return I(f"buffer_store_dwordx4 {src}, v{OVOFF}, {srd(sO)}, s{so} offen offset:{u*1024} {POL['ost']}", tag="ST")


def o_unit(qt, u, mode="st"):
    b = O(qt, 2 * u)
    t = PK(PKN[0]); PKN[0] += 1
    o = []
    r = RC(qt)
    for i in range(4):
        if mode == "pk":
            sel = "op_sel_hi:[1,0]" if r % 2 == 0 else "op_sel:[0,1] op_sel_hi:[1,1]"
            o.append(f"v_pk_mul_f32 v[{b+2*i}:{b+2*i+1}], v[{b+2*i}:{b+2*i+1}], v[{r & ~1}:{(r & ~1) + 1}] {sel}")
        else:
            o += [f"v_mul_f32 v{b+2*i}, v{r}, v{b+2*i}", f"v_mul_f32 v{b+2*i+1}, v{r}, v{b+2*i+1}"]
        o.append(f"v_cvt_pk_bf16_f32 v{t+i}, v{b+2*i}, v{b+2*i+1}")
        if mode == "park":
            o.append(f"v_accvgpr_write_b32 a{Q(1, qt, u) + i}, v{t+i}")
    if mode != "park":
        o.append(st_o(rr('v', t), qt, u))
    return o


def o_offsets():
    return [f"s_add_u32 s{sT1}, s{sOOFF}, 4096", f"s_add_u32 s{sT2}, s{sOOFF}, 8192", f"s_add_u32 s{sT3}, s{sOOFF}, 12288",
            f"s_cmp_eq_u32 s{sWAVE}, 3", f"s_cselect_b32 s{sT3}, {OWS_BRANCH}, s{sT3}"]


def o_epi(qt, mode="st"):
    o = lfin(qt)
    first = o_unit(qt, 0, mode)
    o += first[:3] + lflag(qt) + first[3:]
    for u in range(1, 4):
        o += o_unit(qt, u, mode)
    return o


def boundary(s):
    Z = Seq()
    PKN[0] = 0
    A = add_epoch(Z, s, hh=1, qk_zero=True)
    B = add_epoch(Z, s + 1, hh=0, pv_zero=True)
    for g, x in zip((2, 4, 5, 6, 7), o_offsets()):
        Z.put(A[0] + g, x)
    Z.put(B[2] + 0, f"s_lshl_b32 s{sT0}, s{sWAVE}, 2"); Z.put(B[2] + 1, f"s_add_u32 s{sT0}, s{sT0}, {FLAG}")
    Z.put(A[0] + 1, f"v_mov_b32 v{ZERO}, 0"); Z.put(A[1] + 3, I(poll_issue(2).text.replace(" sc1", ""), tag="POLL"))
    Z.put(B[3] + 3, "ds_write_b32 v2, v1")
    Z.put(B[3] + 8, WAIT(lgkm=2)); Z.put(B[3] + 10, "s_barrier"); Z.put(B[3] + 11, "ds_read_b128 v[4:7], v3")
    G = mkgaps(Z)
    qm = [f"v_accvgpr_mov_b32 a{128+i}, a{192+i}" for i in range(64)]
    e = [o_epi(q, "park") for q in range(4)]
    n2 = len(lfin(2)) + 5
    spread(G, qm, A[0], A[1] + 2)
    spread(G, maxops(1, 0) + e[0], A[1] + 3, A[2] + 10)
    spread(G, maxops(1, 1), A[2] + 11, A[3] + 0)
    spread(G, e[1], A[3] + 1, B[0] + 2)
    spread(G, maxops(1, 2) + e[2][:n2], B[0] + 3, B[0] + 12)
    spread(G, maxops(1, 3), B[0] + 13, B[1] + 2)
    spread(G, e[2][n2:], B[1] + 3, B[2] + 1)
    spread(G, e[3][:12] + [f"v_mov_b32 v1, s{sBAD}", f"v_mov_b32 v2, s{sT0}", f"v_mov_b32 v3, {FLAG}"] + e[3][12:], B[2] + 2, B[3] + 2)
    spread(G, oaddr(), B[3] + 4, B[3] + 15)
    print("boundary est cycles:", sum(16 + G.cost(g) for g in range(len(G.mf))))
    chk = [WAIT(vm=["POLL"])] + mk(f"v_readfirstlane_b32 s{sT0}, v{POLLV}\ns_cmp_ge_u32 s{sT0}, s{sNEED}\ns_cbranch_scc0 L_spin2\nL_spin2b:")
    return autonop(G.emit() + SETVCC() + chk + badcheck("L_loop", lgkm=2) + mk("s_branch L_restart"))


RESTART = f"""L_restart:
s_mov_b32 s{sMODE}, 1
s_waitcnt vmcnt(0) lgkmcnt(0)
s_barrier
s_branch L_start"""


def badcheck(ok, lgkm=0):
    return mk(f"""s_waitcnt lgkmcnt({lgkm})
v_or3_b32 v4, v4, v5, v6
v_or_b32 v4, v4, v7
v_readfirstlane_b32 s{sT0}, v4
s_cmp_eq_u32 s{sT0}, 0
s_cbranch_scc1 {ok}
s_cmp_eq_u32 s{sMODE}, 0
s_cbranch_scc0 {ok}""")


LATE = [(q, u) for q in range(4) for u in range(4)]
def late_plan():
    if OPT.get("early", "0") == "1":
        return dict(zip((47, 48, 49, 50, 51, 52, 53, 55, 56, 57, 58, 59), (1, 1, 1, 1, 1, 1, 2, 1, 1, 2, 2, 2)))
    return dict(zip((55, 56, 57, 58), (4, 4, 4, 4)))


W2BASE = 98304
W2SLOT = [2, 3, 1, 0]
WV2 = lambda i: 21 + i
BV = lambda qi: 1 + qi
OUTV, POLLV, POLLA, ZERO = 3, 16, 30, 120
AA2 = lambda n: 17 + n
ACC2 = lambda qi, n: 32 + (qi * 4 + n) * 4
AF2 = lambda par, n: 64 + (par * 4 + n) * 4
BF = lambda st, ks, qi: (((st % 4) * 4 + ks) * 2 + qi) * 4


def oaddr():
    a, b = MT
    return f"""v_lshrrev_b32 v{a}, 3, v0
v_and_b32 v{b}, 6, v{a}
v_xor_b32 v{b}, v{b}, v0
v_and_b32 v{b}, 7, v{b}
v_lshlrev_b32 v{b}, 4, v{b}
v_lshl_add_u32 v{WV2(0)}, v{a}, 10, v{b}
v_add_u32 v{WV2(1)}, 7168, v{WV2(0)}
v_add_u32 v{WV2(2)}, {2*7168}, v{WV2(0)}
v_add_u32 v{WV2(3)}, {3*7168}, v{WV2(0)}""".split("\n")


def w2_alias(st):
    u = 6 + W2SLOT[st % 4]
    return [("W2", st % 4)] + kv_alias(u) + [("W", u - 5)]


def w2_dma(st):
    return [I(f"s_add_u32 m0, s{sSTL}, {W2BASE + W2SLOT[st % 4]*16384}")] + \
           [I(f"buffer_load_dwordx4 v{WV2(i)}, {srd(sPF)}, s{sWX2} offen offset:{i*1024} lds", tag=f"T{st}", wr=(w2_alias(st), f"T{st}")) for i in range(4)]


def b_loads(st):
    return [I(f"buffer_load_dwordx4 {rr('a', BF(st, ks, qi))}, v{BV(qi)}, {srd(sO)}, s{sOX} offen offset:{ks*1024} sc1", tag=f"T{st}") for ks in range(4) for qi in range(2)]


def head_of(reg, which):
    o = [f"s_xor_b32 s3, s{reg}, s{sMASK}", "s_and_b32 s3, s3, 15", "s_lshl_b32 s3, s3, 1", f"s_lshr_b32 s{sT0}, s{reg}, 4", f"s_add_u32 s3, s3, s{sT0}"]
    if "o" in which:
        o += [f"s_mul_i32 s{sOX}, s3, {120*4096}", f"s_add_u32 s{sOX}, s{sOX}, s{sOB}"]
    if "w" in which:
        o += [f"s_lshl_b32 s3, s3, 17", f"s_add_u32 s{sWX2}, s3, s{sWB}"]
    return o


def signal(half):
    bit = 1 << half
    return mk(f"""s_and_b32 s{sT0}, s{sSIG}, {bit}
s_cselect_b32 s{sT0}, {BIG}, s{sOWN}
s_or_b32 s{sSIG}, s{sSIG}, {bit}
v_lshl_add_u32 v{MT[0]}, v0, 22, s{sT0}
v_mov_b32 v{MT[1]}, 1""") + [I(f"buffer_atomic_add v{MT[1]}, v{MT[0]}, {srd(sMG)}, 0 offen offset:{256*half}", tag="SIG", opt=True)]


def announce():
    return mk(f"""L_announce:
v_mov_b32 v6, 0
v_mov_b32 v7, 1
s_mov_b64 exec, 1
global_atomic_add v6, v7, s[{sDBG}:{sDBG+1}]
s_mov_b64 exec, -1
s_branch L_annback""")


def late_block(ph, s):
    early = s < 55
    o = []
    if OPT.get("early", "0") == "1":
        o = mk(f"L_late{ph}:\ns_cmp_eq_u32 s{sCNT}, 7\ns_cbranch_scc1 L_lateb{ph}") if early else mk(f"L_lateb{ph}:")
    else:
        o = mk(f"L_late{ph}:")
    need = [t for t in (f"K{s+3}", f"V{s+2}") if int(t[1:]) < 64]
    if s == 60:
        need = need + ["ST"]
    if need:
        o.append(WAIT(vm=need))
    o.append(I("s_barrier"))
    if str(ph) == OPT.get("pfph", "t") and not early:
        o.append(I(f"buffer_load_dword v{DUMMY}, v{PFV}, {srd(sPF)}, 0 offen", tag="PF"))
    plan = late_plan()
    if s in plan:
        lo = sum(n for e, n in plan.items() if e < s)
        o += [st_o(rr("a", Q(1, q, u)), q, u) for q, u in LATE[lo:lo + plan[s]]]
    if s == 59 and OPT.get("diag"):
        o += mk(f"""s_lshl_b32 s3, s{sWAVE}, 10
s_add_u32 s3, s3, {FLAG + 20480}
v_lshl_add_u32 v4, v0, 3, s3
ds_read_b64 v[6:7], v4
s_lshl_b32 s3, s2, 11
s_lshl_b32 s{sT0}, s{sWAVE}, 9
s_add_u32 s3, s3, s{sT0}
s_add_u32 s3, s3, {(1<<27) + 0x40000}
v_lshl_add_u32 v5, v0, 3, s3
s_waitcnt lgkmcnt(0)
global_store_dwordx2 v5, v[6:7], s[64:65]""")
    if s == 60:
        o += signal(0)
    if s == 61:
        o += mk(f"v_lshl_add_u32 v{POLLA}, v0, 22, s{sCTR}\nv_lshlrev_b32 v{BV(0)}, 4, v0\nv_add_u32 v{BV(1)}, s{sSPIN}, v{BV(0)}\ns_mov_b32 s{sO+2}, {OWS_BRANCH}") + [poll_issue(0)]
    if s in (59, 60):
        st = s - 59
        o += mk([f"s_mov_b32 s{sSTG}, {st}"] + head_of(sSTG, "w")) + w2_dma(st)[:1] + mk("s_nop 0") + w2_dma(st)[1:]
    return autonop(o + mk(f"s_branch L_lateback{ph}"))


def poll_issue(half):
    if half == 2:
        return I(f"global_load_dword v{POLLV}, v{ZERO}, s[{sDBG}:{sDBG+1}] sc1", tag="POLL")
    return I(f"buffer_load_dword v{POLLV}, v{POLLA}, {srd(sMG)}, 0 offen offset:{256*half} sc1", tag="POLL")


def spin(half, lbl, back):
    return mk(f"""{lbl}:
s_mov_b32 s3, 0
v_mov_b32 v{ZERO}, 0
{lbl}_l:
s_sleep 4""") + [poll_issue(half)] + mk(f"""s_waitcnt vmcnt(0)
v_readfirstlane_b32 s{sT0}, v{POLLV}
s_add_u32 s3, s3, 1
s_cmp_ge_u32 s3, 0x40000
s_cbranch_scc1 {back}
s_cmp_ge_u32 s{sT0}, 16
s_cbranch_scc0 {lbl}_l
s_branch {back}""")


def pack_inplace(qt, u):
    b = O(qt, 2 * u)
    r = RC(qt)
    sel = "op_sel_hi:[1,0]" if r % 2 == 0 else "op_sel:[0,1] op_sel_hi:[1,1]"
    o = [f"v_pk_mul_f32 v[{b+2*i}:{b+2*i+1}], v[{b+2*i}:{b+2*i+1}], v[{r & ~1}:{(r & ~1) + 1}] {sel}" for i in range(4)]
    o += [f"v_cvt_pk_bf16_f32 v{b+i}, v{b+2*i}, v{b+2*i+1}" for i in range(4)]
    return o


def final(s):
    part1 = [WAIT(vm=["POLL"])] + mk(f"""v_readfirstlane_b32 s{sT0}, v{POLLV}
s_mov_b32 s{sSTG}, 0
s_nop 0
s_cmp_ge_u32 s{sT0}, s{sNEED}
s_cbranch_scc0 L_spin0""")
    Z = Seq()
    offs = []
    for b in range(4):
        offs.append(Z.base())
        Z.mf += pv_list(s, b, False)
    offs.append(Z.base())
    for i, l in enumerate(b_loads(0)):
        Z.put(2 * i, l)
    for i, x in enumerate([f"s_mov_b32 s{sSTG}, 1"] + head_of(sSTG, "o")):
        Z.put(9 + i, x)
    for i, l in enumerate(b_loads(1)):
        Z.put(17 + 2 * i, l)
    g = 1
    for x in [f"s_add_u32 s{sOOFF}, s{sOOFF}, {120*4096}"] + o_offsets():
        Z.put(g, x); g += 1
    g = 18
    for x in [f"s_mov_b32 s{sD}, s{sOUTP}", f"s_mov_b32 s{sD+1}, s{sOUTP+1}", f"s_mov_b32 s{sD+2}, {1920*2048}", f"s_mov_b32 s{sD+3}, 0x20000",
              f"s_mov_b32 s{sREQ}, 0", f"s_mov_b32 s{sCNT}, 0"]:
        Z.put(g, x); g += 1
    G = mkgaps(Z)

    def sm(q):
        r = []
        for e in range(8):
            r += sm_ex(q, e)
            if e >= 1 and q not in MSUM: r.append(sm_add(q, e - 1))
            if e >= 2 and e % 2 == 0: r.append(sm_cvt(q, e // 2 - 1))
        r += ([sm_add(q, 7)] if q not in MSUM else []) + [sm_cvt(q, 3)]
        return r
    spread(G, [sm_add(0, 6), sm_add(0, 7)] + sm(1), offs[0], offs[1] - 1)
    spread(G, sm(2), offs[1], offs[2] - 1)
    spread(G, sm(3), offs[2], offs[3] - 1)
    spread(G, lfin(0)[:-1] + lflag() + lfin(1) + lflag() + lfin(2)[:-1] + lflag(), offs[3], offs[4] - 1)
    out = mk(["L_spin0b:"] + head_of(sSTG, "o") + ["s_waitcnt lgkmcnt(0)", "s_barrier", f"v_mov_b32 v{POLLA}, {BIG}"]) + G.emit()
    out += mk(f"""v_lshrrev_b32 v4, 2, v0
v_and_b32 v5, 3, v0
v_bfe_u32 v6, v0, 3, 2
v_lshlrev_b32 v4, 7, v4
v_lshl_add_u32 v4, v6, 5, v4
v_lshl_add_u32 v4, v5, 3, v4
v_add_u32 v{AA2(0)}, {W2BASE}, v4
v_xor_b32 v{AA2(1)}, 32, v{AA2(0)}
v_xor_b32 v{AA2(2)}, 64, v{AA2(0)}
v_xor_b32 v{AA2(3)}, 0x60, v{AA2(0)}""")
    out += mk(lfin(3) + lflag(3))
    out += mk(f"""s_lshl_b32 s{sT0}, s{sWAVE}, 2
s_add_u32 s{sT0}, s{sT0}, {FLAG1}
v_mov_b32 v8, s{sBAD}
v_mov_b32 v9, s{sT0}
v_mov_b32 v10, {FLAG1}
ds_write_b32 v9, v8""")
    out += mk([f"s_mov_b32 s{sSTG}, 2"] + head_of(sSTG, "ow")) + w2_dma(2)[:1]
    mem = w2_dma(2)[1:] + b_loads(2)
    pre = int(OPT.get("o1pre", 0))
    for n, (q, u) in enumerate(LATE):
        out += mk(pack_inplace(q, u))
        if n == 3:
            out += mk("s_waitcnt lgkmcnt(0)\ns_barrier\nds_read_b128 v[4:7], v10")
        if mem:
            out.append(mem.pop(0))
    out += [st_o(rr("v", O(q, 2 * u)), q, u) for q, u in LATE[:pre]]
    out += mk(f"""v_and_b32 v8, 15, v0
v_bfe_u32 v9, v0, 5, 1
v_bfe_u32 v11, v0, 4, 1
v_lshl_or_b32 v9, v11, 1, v9
v_lshlrev_b32 v9, 4, v9
v_lshl_add_u32 v{OUTV}, v8, 11, v9""")
    out += mk([f"s_mov_b32 s{sSTG}, 3"] + head_of(sSTG, "ow"))
    out += badcheck("L_oproj") + mk("s_branch L_restart")
    return autonop(part1), autonop(out)


def rd_a2(st, ks, n, sec):
    return I(f"ds_read_b64_tr_b16 {rr('v', AF2(ks & 1, n) + 2*sec, 2)}, v{AA2(n)} offset:{W2SLOT[st % 4]*16384 + ks*4096 + sec*2048}", rd=(("W2", st % 4), f"T{st}"))


def stage2(st, loop=False):
    out = [WAIT(vm=[f"T{st}"])]
    if loop and st % 4 == 1:
        out += mk(f"v_readfirstlane_b32 s{sT0}, v{POLLV}\ns_nop 1\ns_cmp_ge_u32 s{sT0}, s{sREQ}\ns_cbranch_scc0 L_spin1")
        head, out = out, mk("L_spin1b:")
    else:
        head = []
    out.append(I("s_barrier"))
    ld = None
    if st + 3 < 32:
        w = w2_dma(st + 3)
        out.append(w[0])
        ld = w[1:] + b_loads(st + 3)
    out += [rd_a2(st, 0, n, sec) for n in range(4) for sec in range(2)]
    if loop and st % 4 == 2:
        out.append(poll_issue(1))
    if ld is not None:
        out += ld[:2]; ld = ld[2:]
    mf = []
    for ks in range(4):
        for n in range(4):
            for qi in range(2):
                a = rr("v", ACC2(qi, n))
                mf.append(f"{MF} {a}, {rr('v', AF2(ks & 1, n))}, {rr('a', BF(st, ks, qi))}, {'0' if st == 0 and ks == 0 else a}")
    G = Gaps(mf)
    out.append(WAIT(lgkm="auto"))
    for ks in range(4):
        if ks < 3:
            for n in range(4):
                for sec in range(2):
                    G.put(8 * ks + 2 * n + sec, rd_a2(st, ks + 1, n, sec))
            G.put(8 * ks + 7, WAIT(lgkm="auto"))
        G.put(8 * ks + 3, WAIT(lgkm="auto"))
    if ld is not None:
        for i, l in enumerate(ld):
            G.put(1 + 3 * i, l)
        adv = [f"s_add_u32 s{sSTG}, s{sSTG}, 1"] + head_of(sSTG, "ow")
        for i, p in enumerate(adv):
            G.put((20 + i) if i < 6 else 29 + (i - 6) // 2, p)
    if st < 4:
        pre = int(OPT.get("o1pre", 0))
        per = (16 - pre) // 4
        for i, (q, u) in enumerate(LATE[pre + per * st: pre + per * (st + 1)]):
            G.put(2 + (32 // per) * i, st_o(rr("v", O(q, 2 * u)), q, u))
    if OPT.get("diag2"):
        out.insert(2, I("s_memtime s[86:87]"))
        G.put(30, "v_mov_b32 v13, s86"); G.put(31, "ds_write_b32 v12, v13"); G.put(31, "v_add_u32 v12, 4, v12")
    out += G.emit()
    if loop and st % 4 == 3:
        out += mk(f"""s_add_u32 s{sCNT}, s{sCNT}, 1
s_cmp_eq_u32 s{sCNT}, 2
s_cselect_b32 s{sREQ}, s{sNEED}, 0
s_cmp_eq_u32 s{sCNT}, 1
s_cbranch_scc1 L_signal1""")
    return head, out


def out_store():
    o = ["s_nop 7"]
    for qi in range(2):
        for p in range(2):
            b0, b1 = ACC2(qi, 2 * p), ACC2(qi, 2 * p + 1)
            t = 64 + (qi * 2 + p) * 4
            o += [f"v_cvt_pk_bf16_f32 v{t}, v{b0}, v{b0+1}", f"v_cvt_pk_bf16_f32 v{t+2}, v{b1}, v{b1+1}",
                  f"v_cvt_pk_bf16_f32 v{t+1}, v{b0+2}, v{b0+3}", f"v_cvt_pk_bf16_f32 v{t+3}, v{b1+2}, v{b1+3}",
                  f"v_permlane16_swap_b32 v{t}, v{t+2}", f"v_permlane16_swap_b32 v{t+1}, v{t+3}",
                  f"buffer_store_dwordx4 {rr('v', t)}, v{OUTV}, {srd(sD)}, s{sDOFF1 if qi else sDOFF} offen offset:{p*64}"]
    return autonop(mk(o))


def kaddr():
    return f"""v_and_b32 v5, 15, v0
v_bfe_u32 v6, v0, 5, 1
v_bfe_u32 v7, v0, 4, 1
v_lshl_or_b32 v6, v7, 1, v6
v_xor_b32 v6, v6, v5
v_lshlrev_b32 v6, 4, v6
v_lshl_add_u32 v{KA(0)}, v5, 8, v6
v_xor_b32 v{KA(1)}, 64, v{KA(0)}
v_xor_b32 v{KA(2)}, 0x80, v{KA(0)}
v_xor_b32 v{KA(3)}, 0xc0, v{KA(0)}
v_lshrrev_b32 v5, 2, v0
v_and_b32 v6, 7, v5
v_lshlrev_b32 v5, 8, v5
v_lshl_add_u32 v5, v6, 5, v5
v_and_b32 v6, 3, v0
v_lshl_add_u32 v5, v6, 3, v5
v_add_u32 v5, {VBASE}, v5""".split("\n")


def vaddr():
    return [f"v_xor_b32 v{VA(t)}, {t<<5}, v5" for t in range(8)]


def consts():
    o = [f"v_and_b32 v6, 3, v0", "v_cmp_eq_u32 vcc, 0, v6", "v_mov_b32 v7, 0x3f803f80", f"v_mov_b32 v{LV[0]}, 0", f"v_mov_b32 v{LV[2]}, 0"]
    o += [f"v_cndmask_b32 v{ONES+i}, 0, v7, vcc" for i in range(4)]
    for hh in range(2):
        o += [f"v_mov_b32 v{MG(hh,q)}, 0xff800000" for q in range(3)] + [f"v_mov_b32 v{MG(hh,3)}, s{sT2}"]
    return o


def tail_region(dq):
    Z = Seq()
    for kk in (range(11) if OPT.get("unr1") else (8, 9, 10)):
        add_step(Z, kk, dq=dq)
    b11 = add_step(Z, 11, dq=dq, second=False, vmneed=["S12", "S13", "S14"])
    assert not dq
    blk = {}

    def add_block(p):
        blk[p] = Z.base()
        if p < 7:
            order = [(ti, qt, ks) for qt in range(4) for ti in range(2) for ks in range(4)]
        else:
            order = [(ti, qt, ks) for h in range(2) for qt in range(4) for ti in range(2) for ks in (2 * h, 2 * h + 1)]
        for ti, qt, ks in order:
            k, a = ACC(2 * p + ti, qt)
            Z.mf.append(f"{MF} {rr(k, a)}, {rr('a', PF(p, ti, ks))}, {rr('a', XP(ks, qt))}, {rr(k, a)}")
    for p in range(6):
        add_block(p)
    qk0 = Z.base()
    for qt in range(4):
        Z.mf += qk_chain(0, qt, 0, True, 0, K0F) + qk_chain(0, qt, 1, True, 0, K0F)
    add_block(6); add_block(7)
    E = add_epoch(Z, 0, pv_zero=True)
    ra = lambda p, ti, ks, sec: rd_a(12 + ks, 2 * p + ti, sec, dst=PF(p, ti, ks), off=ks * 16384)
    rx = lambda ks, qt: rd_x(12 + ks, qt, dst=XP(ks, qt), off=ks * 16384)
    g = b11 + 32
    for ks in range(3):
        for ti in range(2):
            Z.put(g, ra(0, ti, ks, 0)); Z.put(g + 1, ra(0, ti, ks, 1)); g += 2
    for qt in range(2):
        for ks in range(3):
            Z.put(g, rx(ks, qt)); g += 1
    assert g == b11 + 50
    Z.put(b11 + 50, WAIT(vm=["S15"])); Z.put(b11 + 51, "s_barrier")
    g = b11 + 52
    for x in [rx(3, 0), ra(0, 0, 3, 0), ra(0, 0, 3, 1), ra(0, 1, 3, 0), ra(0, 1, 3, 1), rx(3, 1)] + [rx(ks, qt) for qt in (2, 3) for ks in range(4)]:
        Z.put(g, x); g += 1
    Z.put(b11 + 63, WAIT(lgkm="auto"))
    Z.put(blk[0] + 7, WAIT(lgkm="auto"))
    nxt = {0: 1, 1: 2, 2: 3, 3: 4, 4: 5, 5: 6, 6: 7}
    for p, n in nxt.items():
        g0 = blk[p] + (3 if p == 0 else 1)
        rs = [ra(n, ti, ks, sec) for ti in range(2) for ks in range(4) for sec in range(2)]
        if p == 5:
            g0 = qk0 + 1
        slots = [g0 + (i * 3) // 2 for i in range(16)]
        for gg, x in zip(slots, rs):
            Z.put(gg, x)
        Z.put((blk[n] - 1), WAIT(lgkm="auto"))
    Z.put(blk[0] + 12, WAIT(lgkm=6)); Z.put(blk[0] + 13, "s_barrier")
    Z.put(blk[5] + 0, WAIT(vm=["K0"])); Z.put(blk[5] + 1, "s_barrier")
    for i, (kt, j) in enumerate([(kt, j) for kt in range(2) for j in range(4)]):
        Z.put(blk[5] + 3 + 3 * i, rd_k(0, kt, j, dst=rr("v", K0F(kt, j))))
    Z.put(qk0 - 1, WAIT(lgkm="auto"))
    Z.put(blk[6] + 29, WAIT(lgkm=0, vm=["K1", "V0", "K2", "V1"])); Z.put(blk[6] + 30, "s_barrier")
    for i, (kt, j) in enumerate([(kt, j) for kt in range(2) for j in range(4)]):
        Z.put(blk[7] + 2 * i, rd_k(1, kt, j))
    for i, (t, sec) in enumerate([(t, sec) for t in range(8) for sec in range(2)]):
        Z.put(blk[7] + 16 + i, rd_v(0, t, sec))
    Z.put(blk[7] + 31, WAIT(lgkm="auto"))
    def kv(grp, g0, g1):
        Z.put(g0 - 1, ("late", [grp[0]])); Z.put(g0, grp[1]); Z.put(g1, grp[2]); Z.put(g1, ("late", grp[3:]))
    D = int(OPT.get('dist', R))
    if D == 8:
        kv(dma_k(0), blk[0] + 5, blk[0] + 8)
        kv(dma_k(1), blk[0] + 28, blk[0] + 30)
        plan = [(1, dma_v(0), dma_k(2)), (2, dma_v(1), dma_k(3)), (3, dma_v(2), None), (4, dma_k(4), None), (5, dma_v(3), None)]
        for p, g1, g2 in plan:
            if p == 5:
                kv(g1, blk[p] + 4, blk[p] + 16)
            elif g2 is None:
                kv(g1, blk[p] + 9, blk[p] + 27)
            else:
                kv(g1, blk[p] + 3, blk[p] + 9); kv(g2, blk[p] + 21, blk[p] + 28)
        kv(dma_k(5), qk0 + 9, qk0 + 27)
        kv(dma_k(6), blk[6] + 9, blk[6] + 21)
        kv(dma_v(4), blk[7] + 1, blk[7] + 5)
        kv(dma_k(7), blk[7] + 9, blk[7] + 13)
        kv(dma_v(5), E[0] + 2, E[0] + 4)
        kv(dma_v(6), E[1] + 3, E[1] + 11)
    else:
        seqs = [dma_k(0)]
        for t in range(1, D):
            seqs += [dma_k(t), dma_v(t - 1)]
        one = [(blk[0] + 5, blk[0] + 28)] + [(blk[p] + 9, blk[p] + 27) for p in (1, 2, 3, 4)] + [(blk[5] + 4, blk[5] + 16), (qk0 + 9, qk0 + 27),
               (blk[6] + 9, blk[6] + 21), (blk[7] + 1, blk[7] + 9)]
        two = {7: [(blk[6] + 3, blk[6] + 9), (blk[6] + 15, blk[6] + 21)], 8: [(blk[7] + 1, blk[7] + 5), (blk[7] + 9, blk[7] + 13)],
               6: [(qk0 + 3, qk0 + 9), (qk0 + 21, qk0 + 27)], 5: [(blk[5] + 4, blk[5] + 10), (blk[5] + 16, blk[5] + 26)]}
        extra = len(seqs) - len(one)
        dbl = [8, 7, 6, 5][:max(0, extra)]
        slots = []
        for i, pr in enumerate(one):
            slots += two[i] if i in dbl else [pr]
        if D == 7:
            seqs = [x for x in seqs if x[1].kw["tag"] not in ("V4", "V5")] + [dma_v(4), dma_v(5)]
        slots = slots[len(slots) - len(seqs):] if OPT.get("late") else slots
        for grp, (g0, g1) in zip(seqs, slots):
            kv(grp, g0, g1)
    Z.put(blk[4] + 0, f"s_cmp_eq_u32 s{sWAVE}, 3"); Z.put(blk[4] + 1, f"s_mov_b32 s{sT2}, 0xff800000")
    Z.put(blk[4] + 2, f"s_cselect_b32 s{sT2}, 0x44fa0000, s{sT2}")
    Z.put(blk[4] + 5, f"s_cselect_b32 s{sM3}, 0, -1")
    Z.put(blk[4] + 3, f"s_mov_b32 s{sCNT}, 0"); Z.put(blk[4] + 4, f"s_mov_b32 s{sPFO}, 0")
    if OPT.get("ts"):
        Z.put(blk[0], f"s_memtime s[{sTS+4}:{sTS+5}]"); Z.put(E[0] + 6, f"s_memtime s[{sTS+6}:{sTS+7}]")
    G = mkgaps(Z)
    spread(G, kaddr(), b11 + 32, b11 + 62)
    nb = {0: blk[1], 1: blk[2], 2: blk[3], 3: blk[4], 4: blk[5], 5: qk0, 6: blk[7]}
    for p in range(7):
        for qt in range(4):
            g0 = blk[p] + 8 * qt + 10
            extra = []
            if p == 5 and qt == 0:
                extra = consts()
            spread(G, conv_unit(p, qt) + extra, g0, g0 + 7)
    hook = blk[5] + 18
    spread(G, maxops(0, 0), qk0 + 10, qk0 + 19)
    spread(G, maxops(0, 1), qk0 + 20, qk0 + 29)
    spread(G, maxops(0, 2), qk0 + 30, blk[6] + 9)
    spread(G, maxops(0, 3), blk[6] + 10, blk[6] + 25)
    spread(G, vaddr(), blk[6] + 26, blk[7] + 8)
    sm0 = []
    for e in range(8):
        sm0 += sm_ex(0, e)
        if 1 <= e <= 6: sm0.append(sm_add(0, e - 1))
        if e >= 2 and e % 2 == 0: sm0.append(sm_cvt(0, e // 2 - 1))
    sm0.append(sm_cvt(0, 3))
    spread(G, sm0, blk[7] + 6, blk[7] + 30)
    spread(G, conv_unit(7, 0) + conv_unit(7, 1) + conv_unit(7, 2) + conv_unit(7, 3), blk[7] + 31 + 5, E[3] + 1)
    if OPT.get("diag"):
        G.va[blk[7]] += mk(f"s_lshl_b32 s3, s{sWAVE}, 10\ns_add_u32 s3, s3, {FLAG + 20480}\nv_mov_b32 v111, s3")
    G.va[hook] += mk(f"s_cmp_lt_u32 s{sINI}, {BIG}\ns_cbranch_scc1 L_announce\nL_annback:\ns_cmp_eq_u32 s{sMODE}, 2\ns_cbranch_scc1 L_mgload\nL_mgback:")
    out = autonop(G.emit())
    out += SETVCC() + mk(f"s_cmp_eq_u32 s{sMODE}, 1\ns_cbranch_scc1 L_maxpass")
    est = sum(16 + G.cost(g) for g in range(blk[0], E[4]))
    print("tail est cycles blk0..ep0 end:", est, "mfma", E[4] - blk[0])
    i = [n for n, x in enumerate(out) if x.text == "L_mgback:"][0]
    return out[:i], out[i:]


def build(opts):
    OPT.clear(); OPT.update({'fp32s': True, 'w3': True}); OPT.update(opts)
    for k in list(OPT):
        if OPT[k] == 'off': del OPT[k]
    for k in POL:
        if k in opts: POL[k] = opts[k].replace("+", " ").replace("-", "")
    ts = opts.get("ts", False)
    L = int(opts.get("la", 4))
    pg = Prog()
    T = "main"

    def stamp(i):
        return mk(f"s_memtime s[{sTS+2*i}:{sTS+2*i+1}]") if ts else []
    entry = f"""
s_cmp_ge_u32 s2, 256
s_cbranch_scc1 L_end
{"s_memtime s[66:67]" if ts else ""}
{"s_memrealtime s[68:69]" if ts else ""}
v_lshrrev_b32 v1, 6, v0
v_and_b32 v0, 63, v0
v_readfirstlane_b32 s{sWAVE}, v1
s_mov_b32 s{sMODE}, 0
s_mov_b32 s{sSIG}, 0
L_start:
"""
    init = f"""
s_bfe_u32 s{sT0}, s2, 0x10002             ; branch
s_mul_i32 s3, s{sT0}, 40
s_add_u32 s{sARG}, s0, s3
s_addc_u32 s{sARG+1}, s1, 0
s_load_dwordx8 s[56:63], s[{sARG}:{sARG+1}], 0     ; x, K, V, wq
s_load_dwordx2 s[64:65], s[0:1], 96                ; ws
s_load_dwordx2 s[34:35], s[{sARG}:{sARG+1}], 32    ; wo
s_load_dwordx2 s[{sOUTP}:{sOUTP+1}], s[0:1], 80
s_load_dwordx2 s[{sDBG}:{sDBG+1}], s[0:1], 88
s_and_b32 s{sT1}, s2, 3
s_lshl_b32 s{sT1}, s{sT1}, 2
s_bfe_u32 s{sT2}, s2, 0x20003
s_add_u32 s{sT1}, s{sT1}, s{sT2}
s_lshr_b32 s{sT2}, s2, 5                  ; batch
v_lshrrev_b32 v1, 2, v0
v_and_b32 v2, 3, v0
v_lshrrev_b32 v3, 4, v0
v_lshlrev_b32 v4, 1, v3
v_and_b32 v4, 2, v4
v_lshrrev_b32 v5, 1, v3
v_mul_u32_u24 v5, 3, v5
v_xor_b32 v4, v4, v5
v_xor_b32 v4, v4, v2
v_lshlrev_b32 v4, 4, v4
v_lshl_add_u32 v4, v1, 10, v4
s_lshl_b32 s3, s{sWAVE}, 16
v_add_u32 v{XV(0)}, s3, v4
v_add_u32 v{XV(1)}, {15360}, v{XV(0)}
v_add_u32 v{XV(2)}, {2*15360}, v{XV(0)}
v_add_u32 v{XV(3)}, {3*15360}, v{XV(0)}
v_lshrrev_b32 v4, 5, v0
v_and_b32 v5, 31, v0
s_and_b32 s3, s{sWAVE}, 1
s_lshl_b32 s3, s3, 3
v_lshl_or_b32 v6, v4, 1, s3
v_xor_b32 v5, v5, v6
v_lshlrev_b32 v5, 4, v5
v_lshl_add_u32 v5, v4, 13, v5
s_lshl_b32 s3, s{sWAVE}, 16
v_add_u32 v{WV(0)}, s3, v5
v_xor_b32 v6, 64, v{WV(0)}
v_add_u32 v{WV(1)}, {15360}, v6
v_add_u32 v{WV(2)}, {2*15360}, v{WV(0)}
v_add_u32 v{WV(3)}, {3*15360}, v6
s_lshl_b32 s{sKVL}, s{sWAVE}, 11
s_lshl_b32 s{sSTL}, s{sWAVE}, 12
s_mov_b32 s{sXOFF}, 0
s_lshl_b32 s{sWOFF}, s{sT1}, 9
{"s_xor_b32 s3, s%d, s%d" % (sT2, sT1) if opts.get("rotx") else "s_mov_b32 s3, s%d" % sT2}
s_and_b32 s3, s3, {int(opts.get("rot1", 3))}
s_lshl_b32 s{sROTX}, s3, 7
s_lshl_b32 s{sROTW}, s3, 19
s_mov_b32 s{sXX}, s{sROTX}
s_xor_b32 s{sWX}, s{sWOFF}, s{sROTW}
s_mul_i32 s3, s{sT2}, 245760
s_waitcnt lgkmcnt(0)
s_add_u32 s{sX}, s56, s3
s_addc_u32 s{sX+1}, s57, 0
s_mov_b32 s{sX+2}, 245760
s_mov_b32 s{sX+3}, 0x20000
s_mov_b32 s{sW}, s62
s_mov_b32 s{sW+1}, s63
s_mov_b32 s{sW+2}, 0x400000
s_mov_b32 s{sW+3}, 0x20000
"""

    def issue(items):
        r = []
        for pre, d, post in items:
            r += pre + ([I("s_nop 0")] if pre else []) + [d] + post
        return r
    seq = mk(init) + stamp(0) + issue(stage_items(0))
    pfmask = f"v_lshrrev_b32 v1, 3, v0\nv_lshl_add_u32 v{PFV}, v1, 23, v{PFV}" if opts.get("pfph", "t") == "t" else ""
    rest = f"""
s_lshl_b32 s3, s{sT2}, 4
s_add_u32 s3, s3, s{sT1}
s_lshl_b32 s3, s3, 19
{"s_and_b32 s3, s3, 0x180000" if opts.get("kvl2") else ""}
s_add_u32 s{sK}, s58, s3
s_addc_u32 s{sK+1}, s59, 0
s_mov_b32 s{sK+2}, 0x80000
s_mov_b32 s{sK+3}, 0x20000
s_add_u32 s{sV}, s60, s3
s_addc_u32 s{sV+1}, s61, 0
s_mov_b32 s{sV+2}, 0x80000
s_mov_b32 s{sV+3}, 0x20000
s_mul_i32 s3, s{sT0}, {OWS_BRANCH}
s_add_u32 s{sO}, s64, s3
s_addc_u32 s{sO+1}, s65, 0
s_and_b32 s3, s{sSIG}, 1
s_cselect_b32 s{sO+2}, 0, {OWS_BRANCH}
s_mov_b32 s{sO+3}, 0x20000
s_mov_b32 s{sPF}, s34
s_mov_b32 s{sPF+1}, s35
s_mov_b32 s{sPF+2}, 0x400000
s_mov_b32 s{sPF+3}, 0x20000
s_add_u32 s{sMG}, s64, {MGWS}
s_addc_u32 s{sMG+1}, s65, 0
s_mov_b32 s{sMG+2}, 0x400000
s_mov_b32 s{sMG+3}, 0x20000
s_mul_i32 s3, s{sT2}, 15
s_lshl_b32 s{sT3}, s{sWAVE}, 2
s_add_u32 s3, s3, s{sT3}
s_lshl_b32 s3, s3, 12
s_mul_i32 s{sT3}, s{sT1}, {2*120*4096}
s_add_u32 s{sOOFF}, s3, s{sT3}
s_mov_b32 s{sKOFF}, s{sKVL}
s_mov_b32 s{sVOFF}, s{sKVL}
s_lshr_b32 s3, s2, 3
s_lshl_b32 s{sROT}, s2, 2
s_xor_b32 s3, s3, s{sROT}
s_and_b32 s3, s3, {31 if not opts.get("norot") else 0}
s_lshl_b32 s{sROT}, s3, 13
s_xor_b32 s{sKX}, s{sKOFF}, s{sROT}
s_xor_b32 s{sVX}, s{sVOFF}, s{sROT}
s_mov_b32 s{sC}, {f2u(QSCALE):#x}
s_mov_b32 s{sBAD}, 0
s_mov_b32 s{sTH}, {f2u(LTHRESH):#x}
s_mov_b32 s{sCNT}, 0
s_mov_b32 s{sRD}, {idx(0)*16384}
s_add_u32 s{sDMA}, s{sSTL}, {idx(L-1)*16384}
s_and_b32 s3, s2, 3
s_lshr_b32 s{sT3}, s2, 3
s_lshl_b32 s3, s3, 5
s_add_u32 s3, s3, s{sT3}
s_lshl_b32 s3, s3, 15
s_lshl_b32 s{sT3}, s{sWAVE}, 13
s_add_u32 s3, s3, s{sT3}
v_lshl_add_u32 v{PFV}, v0, 7, s3
{pfmask}
s_lshl_b32 s3, s{sT0}, 3
s_add_u32 s{sOWN}, s3, s{sT2}
s_lshl_b32 s{sOWN}, s{sOWN}, 9
s_add_u32 s{sOWN}, s{sOWN}, {FLW}
s_cmp_eq_u32 s{sWAVE}, 0
s_cselect_b32 s{sOWN}, s{sOWN}, {BIG}
s_and_b32 s{sT3}, s{sSIG}, 4
s_or_b32 s{sT3}, s{sT3}, s{sT1}
s_cselect_b32 s{sINI}, {BIG}, s{sOWN}
s_or_b32 s{sSIG}, s{sSIG}, 4
s_and_b32 s{sT1}, s2, 3
s_lshl_b32 s{sT1}, s{sT1}, 1
s_lshr_b32 s{sT3}, s2, 7
s_add_u32 s{sT1}, s{sT1}, s{sT3}
s_add_u32 s{sCTR}, s3, s{sT1}
s_lshl_b32 s{sCTR}, s{sCTR}, 9
s_add_u32 s{sCTR}, s{sCTR}, {FLW}
s_cmp_eq_u32 s{sWAVE}, 0
s_cselect_b32 s{sCTR}, s{sCTR}, {BIG}
s_cselect_b32 s{sNEED}, 16, 0
s_bfe_u32 s{sT2}, s2, 0x10006             ; m half
s_bfe_u32 s{sT3}, s2, 0x30003             ; n tile
s_mul_i32 s{sT1}, s{sT1}, 15
s_lshl_b32 s3, s{sT2}, 3
s_add_u32 s{sT1}, s{sT1}, s3
s_lshl_b32 s3, s{sWAVE}, 1
s_add_u32 s{sT1}, s{sT1}, s3
s_lshl_b32 s{sOB}, s{sT1}, 12
s_lshl_b32 s{sWB}, s{sWAVE}, 15
s_lshl_b32 s3, s{sT3}, 7
s_add_u32 s{sWB}, s{sWB}, s3
s_lshl_b32 s{sDOFF}, s{sT1}, 15
s_add_u32 s{sDOFF}, s{sDOFF}, s3
s_lshl_b32 s3, s{sT0}, 10
s_add_u32 s{sDOFF}, s{sDOFF}, s3
s_add_u32 s{sDOFF1}, s{sDOFF}, 32768
s_lshr_b32 s3, s2, 6
s_lshl_b32 s3, s3, 1
s_add_u32 s3, s3, s{sT3}
s_and_b32 s{sMASK}, s3, {int(opts.get("stag", 3))}
s_lshl_b32 s3, s{sT2}, 2
s_add_u32 s3, s3, s{sWAVE}
s_cmp_eq_u32 s3, 7
s_cselect_b32 s{sDOFF1}, 0x40000000, s{sDOFF1}
s_mov_b32 s{sSPIN}, 4096
s_cselect_b32 s{sSPIN}, 0x40000000, s{sSPIN}
v_lshlrev_b32 v{OVOFF}, 4, v0
v_and_b32 v1, 15, v0
v_lshrrev_b32 v2, 4, v0
s_lshl_b32 s3, s{sWAVE}, 3
s_and_b32 s3, s3, 15
v_add_u32 v3, s3, v2
v_xor_b32 v4, v1, v3
v_lshlrev_b32 v4, 4, v4
v_lshl_add_u32 v{KV0}, v2, 8, v4
v_xor_b32 v{KV1}, 64, v{KV0}
v_lshlrev_b32 v3, 1, v2
v_xor_b32 v4, v1, v3
v_lshlrev_b32 v4, 4, v4
v_lshl_add_u32 v{VV0}, v2, 8, v4
v_xor_b32 v{VV1}, 0x80, v{VV0}
v_lshrrev_b32 v3, 2, v1
v_lshlrev_b32 v4, 1, v3
v_and_b32 v4, 2, v4
v_lshrrev_b32 v5, 1, v3
v_mul_u32_u24 v5, 3, v5
v_xor_b32 v4, v4, v5
v_xor_b32 v4, v4, v2
v_lshlrev_b32 v4, 4, v4
v_lshl_add_u32 v4, v1, 6, v4
s_add_u32 s3, s{sSTL}, {idx(0)*16384}
v_add_u32 v{XA}, s3, v4
v_bfe_u32 v3, v0, 2, 2
v_and_b32 v4, 3, v0
v_and_b32 v5, 1, v2
v_lshl_or_b32 v5, v5, 2, v3
v_lshl_add_u32 v6, v2, 3, v3
v_lshlrev_b32 v6, 9, v6
v_lshl_add_u32 v6, v5, 5, v6
v_lshl_add_u32 v6, v4, 3, v6
v_add_u32 v{AA(0)}, {WOFFL + idx(0)*16384}, v6
"""
    seq += mk(rest)
    seq += mk([f"v_xor_b32 v{AA(u)}, {u<<5}, v{AA(0)}" for u in range(1, 8)])
    if not opts.get("nopfcode"):
        seq += mk(f"""s_getpc_b64 s[88:89]
L_pc:
s_sub_u32 s88, s88, L_pc-{KNAME}
s_subb_u32 s89, s89, 0
s_lshl_b32 s3, s{sWAVE}, 13
v_lshl_add_u32 v1, v0, 7, s3
v_min_u32 v1, L_codeend-{KNAME}-4, v1
v_add_u32 v2, 0x8000, v1
v_min_u32 v2, L_codeend-{KNAME}-4, v2""")
        seq += [I(f"global_load_dword v{DUMMY}, v1, s[88:89]", tag="PFC"), I(f"global_load_dword v3, v2, s[88:89]", tag="PFC")]
    seq += mk(f"v_lshl_add_u32 v4, v0, 22, s{sINI}\nv_mov_b32 v5, 0")
    seq += [I(f"buffer_store_dword v5, v4, {srd(sMG)}, 0 offen sc1", tag="INI"), I(f"buffer_store_dword v5, v4, {srd(sMG)}, 0 offen offset:256 sc1", tag="INI")]
    seq += mk([f"v_mov_b32 v{i}, 0" for i in range(32, 256)])
    seq += mk([f"v_accvgpr_write_b32 a{i}, 0" for i in range(224, 256)])
    for st in range(1, L - 1):
        seq += issue(stage_items(st))
    if OPT.get("diag1"):
        seq += mk(f"""s_lshl_b32 s3, s2, 10
s_lshl_b32 s{sT0}, s{sWAVE}, 8
s_add_u32 s3, s3, s{sT0}
s_add_u32 s3, s3, {(1<<27) + 0x100000}
v_mov_b32 v1, s3""")
    seq += [WAIT(vm=["S0"]), I("s_barrier")]
    seq += [rd_x(0, m) for m in range(4)]
    for T_ in range(8):
        seq += [rd_a(0, T_, 0), rd_a(0, T_, 1)]
    seq += issue(stage_items(L - 1)[:5])
    seq += stamp(1) + [WAIT(lgkm=0 if ts else "auto")]

    def front(tr, upto_ep0=True, mgload=False):
        pg.visit(tr, "init", autonop(copy_seq(seq)))
        if not OPT.get("unr1"):
            pg.visit(tr, "lbl_p1", mk(".p2align 3\nL_p1loop:"))
        for kk in range(0 if OPT.get("unr1") else 8):
            Z = Seq()
            add_step(Z, kk, L=L, loop_end=(4 if kk & 1 else None))
            o = mkgaps(Z).emit()
            if kk & 1:
                o += mk("s_cbranch_scc1 L_p1loop")
            pg.visit(tr, f"p1_{kk & 1}", o)
        s0 = -1 if OPT.get("unr1") else 7
        dq = [(-9, it) for it in stage_items(s0 + L)[5:]]
        for st in range(s0 + 1 + L, 16):
            dq += [(st - 5, it) for it in stage_items(st)]
        t1, t2 = tail_region(dq)
        pg.visit(tr, "tail1", t1)
        if mgload:
            pg.visit(tr, "mgload", mgload_seg())
        pg.visit(tr, "tail2", t2)

    def copy_seq(sq):
        return [I(x.text, **x.kw) for x in sq]

    def loop(tr, s0, w3=False):
        pg.visit(tr, "lbl_loop", mk(".p2align 3\nL_loop:"))
        for s in range(1, 31):
            ph = s % 8
            ctl = {6: "exit", 0: 8}.get(ph, ph)
            h, b3, alt, e = epoch(s0 + s, ctl=ctl)
            pg.visit(tr, f"ep_{ph}", h)
            if b3:
                if w3:
                    pg.visit(tr, f"alt_{ph}", alt)
                else:
                    pg.visit(tr, f"ep3_{ph}", b3)
                pg.visit(tr, f"epe_{ph}", e)
            if isinstance(ctl, int):
                g = s0 + s
                if g >= 55:
                    pg.visit(tr, f"late_{ctl}", late_block(ctl, g))
                elif g >= 47 and OPT.get("early", "0") == "1":
                    pg.visit(tr, f"early_{ctl}", late_block(ctl, g))
                else:
                    pg.visit(tr, f"nl_{ctl}", [WAIT(vm=[f"K{g+3}", f"V{g+2}"]), I("s_barrier")])
                pg.visit(tr, f"lb_{ctl}", mk(f"L_lateback{ctl}:" + ("\ns_branch L_loop" if ctl == 8 else "")))
        pg.visit(tr, "exit", mk(f"L_exit:\ns_cmp_eq_u32 s{sCNT}, 8\ns_cbranch_scc1 L_final"))

    def body(tr, spins=False):
        loop(tr, 0, spins)
        pg.visit(tr, "boundary", boundary(31))
        loop(tr, 32, spins)
        f1, f2 = final(63)
        pg.visit(tr, "final1", mk("L_final:") + (mk(f"s_memtime s[{sTS+8}:{sTS+9}]") if ts else []) + f1)
        if spins:
            pg.visit(tr, "spin0", spin(0, "L_spin0", "L_spin0b"))
        pg.visit(tr, "final2", f2)
        lbl = mk("L_oproj:")
        if OPT.get("diag2"):
            lbl += mk(f"s_lshl_b32 s3, s{sWAVE}, 8\ns_add_u32 s3, s3, {FLAG1 + 1024}\nv_mov_b32 v12, s3")
        pg.visit(tr, "lbl_o", lbl)
        for st in range(32):
            lp = 4 <= st < 28
            if st == 4:
                pg.visit(tr, "lbl_o2", mk(".p2align 3\nL_oloop:"))
            h, t = stage2(st, loop=lp)
            nm = f"o_{st % 4}" if lp else f"o_p{st}"
            if h:
                pg.visit(tr, nm + "h", h)
                if spins and st == 13:
                    pg.visit(tr, "spin1", spin(1, "L_spin1", "L_spin1b"))
            pg.visit(tr, nm, t)
            if lp and st % 4 == 3:
                if st == 7 and spins:
                    pg.visit(tr, "signal1", mk("L_signal1:") + autonop(signal(1)) + mk(f"v_lshl_add_u32 v{POLLA}, v0, 22, s{sCTR}\ns_branch L_oloop"))
                else:
                    pg.visit(tr, "o_back", mk(f"s_cmp_lt_u32 s{sCNT}, 6\ns_cbranch_scc1 L_oloop"))
        pg.visit(tr, "ostore", out_store() + mk("s_branch L_done"))

    def mgload_seg():
        o = mk(f"L_mgload:\ns_lshl_b32 s3, s2, 13\ns_add_u32 s3, s3, s{sKVL}")
        o += [I(f"buffer_load_dword v{MG(hh,q)}, v{OVOFF}, {srd(sMG)}, s3 offen offset:{hh*1024 + q*4} sc1") for hh in range(2) for q in range(4)]
        o += mk("s_waitcnt vmcnt(0)\ns_branch L_mgback")
        return o

    def maxpass():
        o = mk(f"""L_maxpass:
s_waitcnt vmcnt(0) lgkmcnt(0)
s_barrier
s_mov_b32 s{sKOFF}, s{sKVL}
s_xor_b32 s{sKX}, s{sKOFF}, s{sROT}""")
        for hh in range(2):
            o += mk(f"s_mov_b32 s{sCNT}, 0\nL_maxloop{hh}:")
            d = dma_k(64 + 8 * hh)
            o += [d[0], I("s_nop 0")] + d[1:] + mk("s_waitcnt vmcnt(0)\ns_barrier")
            o += [rd_k(64 + 8 * hh, kt, j) for kt in range(2) for j in range(4)] + mk("s_waitcnt lgkmcnt(0)\ns_barrier")
            for qt in range(4):
                o += mk(qk_chain(0, qt, 0, True, hh) + qk_chain(0, qt, 1, True, hh))
            o += mk("s_nop 7")
            for qt in range(4):
                o += mk([f"v_max3_f32 v{MG(hh,qt)}, v{MG(hh,qt)}, v{S(qt,2*i)}, v{S(qt,2*i+1)}" for i in range(4)])
            o += mk(f"s_add_u32 s{sCNT}, s{sCNT}, 1\ns_cmp_lt_u32 s{sCNT}, 32\ns_cbranch_scc1 L_maxloop{hh}")
        o += mk(f"s_lshl_b32 s3, s2, 13\ns_add_u32 s3, s3, s{sKVL}")
        o += [I(f"buffer_store_dword v{MG(hh,q)}, v{OVOFF}, {srd(sMG)}, s3 offen offset:{hh*1024 + q*4} sc1") for hh in range(2) for q in range(4)]
        o += mk(f"s_mov_b32 s{sMODE}, 2\ns_waitcnt vmcnt(0) lgkmcnt(0)\ns_barrier\ns_branch L_start")
        return o

    pg.visit(T, "entry", autonop(mk(entry)))
    front(T)
    body(T)
    pg.visit(T, "restart", mk(RESTART))
    front(T)
    pg.visit(T, "maxpass", maxpass())
    front(T, mgload=True)
    body(T, spins=True)
    pg.visit("x", "spin2", spin(2, "L_spin2", "L_spin2b"))
    pg.visit("x", "announce", announce())
    end = mk("L_done:")
    if ts:
        end += mk(f"""s_memtime s[{sTS}:{sTS+1}]
s_memrealtime s[{sTS+10}:{sTS+11}]
s_waitcnt lgkmcnt(0)
s_add_u32 s{sK}, s64, {1<<27}
s_addc_u32 s{sK+1}, s65, 0
s_mov_b32 s{sK+2}, 0x100000
s_mov_b32 s{sK+3}, 0x20000
v_mov_b32 v32, s{sTS}
v_mov_b32 v33, s{sTS+2}
v_mov_b32 v34, s{sTS+4}
v_mov_b32 v35, s{sTS+6}
v_mov_b32 v36, s{sTS+8}
v_mov_b32 v37, s{sTS+10}
v_mov_b32 v38, s66
v_mov_b32 v39, s68
s_lshl_b32 s3, s2, 7
s_lshl_b32 s{sT0}, s{sWAVE}, 5
s_add_u32 s3, s3, s{sT0}
v_mov_b32 v40, s3
buffer_store_dwordx4 v[32:35], v40, {srd(sK)}, 0 offen
buffer_store_dwordx4 v[36:39], v40, {srd(sK)}, 0 offen offset:16""")
    if OPT.get("diag2"):
        end += mk(f"""s_lshl_b32 s3, s{sWAVE}, 8
s_add_u32 s3, s3, {FLAG1 + 1024}
v_lshl_add_u32 v40, v0, 2, s3
ds_read_b32 v42, v40
s_lshl_b32 s3, s2, 10
s_lshl_b32 s{sT0}, s{sWAVE}, 8
s_add_u32 s3, s3, s{sT0}
s_add_u32 s3, s3, 0xc0000
v_lshl_add_u32 v41, v0, 2, s3
s_waitcnt lgkmcnt(0)
buffer_store_dword v42, v41, {srd(sK)}, 0 offen""")
    end += mk("L_end:\ns_endpgm")
    pg.visit("end", "end", end)
    pg.resolve()
    errs = pg.check()
    return pg.text(), errs
```
